```python
import torch

def _softmax(x, axis=-1):
    return torch.softmax(x, dim=axis)

def _gelu(x):
    return torch.nn.functional.gelu(x, approximate='tanh')

def _silu(x):
    return torch.nn.functional.silu(x)

def _sigmoid(x):
    return torch.sigmoid(x)

def _layernorm(x, axis=-1, eps=1e-05):
    m = x.mean(dim=axis, keepdim=True)
    v = x.var(dim=axis, keepdim=True, unbiased=False)
    return (x - m) / torch.sqrt(v + eps)

def _scatter_add(tgt, idx, src, axis=0):
    return tgt.clone().index_add_(axis, idx, src)

def _segment_sum(src, seg, n):
    out = torch.zeros((n,) + src.shape[1:], dtype=src.dtype)
    return out.index_add_(0, seg, src)

def _pad(x, pw):
    flat = tuple((v for pair in reversed(pw) for v in pair))
    return torch.nn.functional.pad(x, flat)
kernel_name = 'standalone__factorization_afm__recsys'

def setup_inputs():

    _w = lambda a: (lambda t: t.to(torch.bfloat16) if t.is_floating_point() else t)(torch.as_tensor(a))
    B, F, D, V = (1024, 26, 128, min(1000000, 100000))
    A = D
    ii, jj = tuple(torch.triu_indices(F, F, 1).unbind(0))
    return {'idx': _w((lambda lo, hi, *s: torch.randint(lo, hi, s))(0, V, B, F).to(torch.int64)), 'table': _w((lambda *s: torch.randn(*s, dtype=torch.bfloat16) * 0.8)(V, D)), 'ii': _w(ii.to(torch.int64)), 'jj': _w(jj.to(torch.int64)), 'W': _w((lambda *s: torch.randn(*s, dtype=torch.bfloat16) * 0.4)(D, A) * (1.0 / D ** 0.5)), 'b': _w((lambda *s: torch.randn(*s, dtype=torch.bfloat16) * 0.4)(A)), 'h': _w((lambda *s: torch.randn(*s, dtype=torch.bfloat16) * 0.4)(A)), 'p': _w((lambda *s: torch.randn(*s, dtype=torch.bfloat16) * 0.8)(D))}

def reference(idx, table, ii, jj, W, b, h, p):
    emb = table[idx]
    ei = emb[:, ii, :].clone()
    ej = emb[:, jj, :].clone()
    pair = ei * ej
    hid = pair @ W + b
    hid = 0.5 * (hid + torch.abs(hid))
    e = hid @ h
    alpha = _softmax(e, axis=-1)
    pooled = torch.einsum('bp,bpd->bd', alpha, pair)
    return pooled @ p
```

```python
import sys
MODE = sys.argv[2] if len(sys.argv) > 2 else ''
TIMING = MODE == 'time'
DEBUG = MODE == 'dbg'
NOINT = False
EXP = sys.argv[3] if len(sys.argv) > 3 else ''

HDR = open('standalone__factorization_afm__recsys.s.ref').read().split('; Override launch')[0]

ROWSTRIDE = 528
EBYTES = 13824
WSTAGE = 32768
QOFF = EBYTES
ETAB = EBYTES + 4096 + 256
WAVEBYTES = ETAB + 11*256
LDS_TOTAL = WSTAGE + 4 * WAVEBYTES

out = []
def e(s): out.append('    ' + s)
def lbl(s): out.append(s + ':')
def vr(a, n=1): return f'v{a}' if n == 1 else f'v[{a}:{a+n-1}]'
def ar(a, n=1): return f'a{a}' if n == 1 else f'a[{a}:{a+n-1}]'

LANE = 1
T0 = 2
EACC0, EACC1 = 8, 9
VOFFI, VOFFJ = 10, 11
VNI, VNJ = 12, 13
VET = 14
VLO = 15
ST = 16
TMP = 48
ACC = [56, 72]
BIAS = 88
BF = [152, 184]
H = 128
E16 = 216
VHALF32 = 248

stampn = [0]
def stamp():
    if TIMING:
        e('s_waitcnt vmcnt(0) lgkmcnt(0)')
        e(f's_memtime s[{80+2*stampn[0]}:{81+2*stampn[0]}]')
        stampn[0] += 1

def srd(dst, pair, nbytes):
    e(f's_mov_b32 s{dst}, s{pair}')
    e(f's_mov_b32 s{dst+1}, s{pair+1}')
    e(f's_mov_b32 s{dst+2}, {nbytes}')
    e(f's_mov_b32 s{dst+3}, 0x00020000')

def gen_reads(s, slot):
    b = ST + 16*slot
    return [f'ds_read_b128 {vr(b,4)}, v{VOFFI} offset:{64*s}',
            f'ds_read_b128 {vr(b+4,4)}, v{VOFFI} offset:{64*s+16}',
            f'ds_read_b128 {vr(b+8,4)}, v{VOFFJ} offset:{64*s}',
            f'ds_read_b128 {vr(b+12,4)}, v{VOFFJ} offset:{64*s+16}']
def gen_math(s, slot, buf):
    b = ST + 16*slot
    r = [f'v_mul_f32 v{b+i}, v{b+i}, v{b+8+i}' for i in range(8)]
    r += [f'v_cvt_pk_bf16_f32 v{BF[buf]+4*s+i}, v{b+2*i}, v{b+2*i+1}' for i in range(4)]
    return r
def epilogue(mtp, accp):
    a = ACC[accp]
    r = [f'v_cvt_pk_bf16_f32 v{TMP+i}, v{a+2*i}, v{a+2*i+1}' for i in range(8)]
    r += [f'v_pk_max_i16 v{TMP+i}, v{TMP+i}, 0' for i in range(8)]
    for u in range(2):
        c = '0' if (mtp == 0 and u == 0) else vr(E16,16)
        if u == 0: r += ['s_nop 1']
        r += [f'v_mfma_f32_32x32x16_bf16 {vr(E16,16)}, {ar(H+8*mtp+4*u,4)}, {vr(TMP+4*u,4)}, {c}']
    return r
def finalize_e():
    return ['s_nop 7', 's_nop 4',
            f'ds_write_b32 v{VET}, v{E16}',
            f'v_add_u32 v{VET}, 256, v{VET}']

def tile(bufU, bufG):
    for mt in range(4):
        accc = mt & 1
        accp = accc ^ 1
        mtp = (mt + 3) % 4
        a = ACC[accp]
        rd = gen_reads(2*mt, 0) + gen_reads(2*mt+1, 1)
        cv = lambda i: f'v_cvt_pk_bf16_f32 v{TMP+i}, v{a+2*i}, v{a+2*i+1}'
        pm = lambda i: f'v_pk_max_i16 v{TMP+i}, v{TMP+i}, 0'
        def s2(u):
            c = '0' if (mtp == 0 and u == 0) else vr(E16,16)
            return f'v_mfma_f32_32x32x16_bf16 {vr(E16,16)}, {ar(H+8*mtp+4*u,4)}, {vr(TMP+4*u,4)}, {c}'
        fill = rd[:]
        fill += [cv(i) for i in range(4)] + [pm(i) for i in range(4)]
        fill += [cv(i) for i in range(4,8)] + [pm(i) for i in range(4,8)]
        s2a_after = len(rd) + 8 + 2
        s2b_after = len(fill) + 2
        fill += ['s_waitcnt lgkmcnt(4)'] + gen_math(2*mt, 0, bufG)
        fin_after = None
        if mt == 0:
            fin_after = len(fill)
            fill += [f'ds_write_b32 v{VET}, v{E16}', f'v_add_u32 v{VET}, 256, v{VET}']
        fill += ['s_waitcnt lgkmcnt(%d)' % (1 if mt == 0 else 0)] + gen_math(2*mt+1, 1, bufG)
        if mt == 3:
            fill += ['s_waitcnt vmcnt(0)',
                     f'v_mad_u32_u24 v{VOFFI}, v{VNI}, s7, v{VHALF32}',
                     f'v_mad_u32_u24 v{VOFFJ}, v{VNJ}, s7, v{VHALF32}',
                     's_add_u32 s10, s10, 128',
                     f'buffer_load_dword v{VNI}, v{VLO}, s[44:47], s10 offen',
                     f'buffer_load_dword v{VNJ}, v{VLO}, s[48:51], s10 offen']
        n = len(fill)
        nanch = 10
        pos = [round(k * n / nanch) for k in range(nanch)]
        kinds = ['m'] * nanch
        ia = next(k for k in range(nanch) if pos[k] >= s2a_after)
        kinds[ia] = 'a'
        ib = next(k for k in range(nanch) if pos[k] >= s2b_after and k > ia)
        kinds[ib] = 'b'
        seq = []
        ms = 0
        for k in range(nanch):
            if kinds[k] == 'm':
                s = ms; ms += 1
                c = vr(BIAS+16*mt, 16) if s == 0 else vr(ACC[accc], 16)
                seq.append(f'v_mfma_f32_32x32x16_bf16 {vr(ACC[accc],16)}, {ar((mt*8+s)*4,4)}, {vr(BF[bufU]+4*s,4)}, {c}')
            else:
                seq.append(s2(0 if kinds[k] == 'a' else 1))
            hi = pos[k+1] if k+1 < nanch else n
            seq += fill[pos[k]:hi]
        if mt == 0:
            i_b = max(i for i, x in enumerate(seq) if x.startswith('v_mfma') and f'v[{E16}:' in x.split(',')[0])
            i_w = next(i for i, x in enumerate(seq) if x.startswith('ds_write_b32'))
            assert i_w - i_b > 12, (i_b, i_w)
        for x in seq: e(x)

def body():
    e('s_cmp_ge_u32 s2, 256')
    e('s_cbranch_scc1 L_end')
    stamp()
    e('s_load_dwordx16 s[16:31], s[0:1], 0')
    e('s_load_dwordx2 s[32:33], s[0:1], 64')
    e(f'v_and_b32 v{LANE}, 63, v0')
    e('v_lshrrev_b32 v2, 6, v0')
    e('s_nop 0')
    e('v_readfirstlane_b32 s3, v2')
    e('s_lshl_b32 s4, s2, 2')
    e('s_add_u32 s4, s4, s3')
    e('s_mul_i32 s5, s3, %d' % WAVEBYTES)
    e('s_add_u32 s5, s5, %d' % WSTAGE)
    e('s_mov_b32 s7, %d' % ROWSTRIDE)
    e('s_mul_i32 s6, s4, 104')
    e(f'v_lshrrev_b32 v5, 4, v{LANE}')
    e('v_lshlrev_b32 v6, 2, v5')
    e('v_add_u32 v6, s6, v6')
    e(f'v_and_b32 v11, 15, v{LANE}')
    e('v_lshlrev_b32 v12, 4, v11')
    e('v_lshlrev_b32 v3, 4, v0')
    e(f'v_lshrrev_b32 v8, 5, v{LANE}')
    e('v_lshlrev_b32 v9, 3, v8')
    e('v_lshlrev_b32 v10, 4, v8')
    e('s_waitcnt lgkmcnt(0)')
    srd(36, 16, 1024*26*4)
    for q in range(7):
        e(f'buffer_load_dword v{96+q}, v6, s[36:39], 0 offen offset:{16*q}')
    srd(52, 24, 128*128*2)
    for q in range(8):
        if q:
            e(f'v_add_u32 v4, {4096*q}, v3')
            e(f'buffer_load_dwordx4 {vr(152+4*q,4)}, v4, s[52:55], 0 offen')
        else:
            e(f'buffer_load_dwordx4 {vr(152,4)}, v3, s[52:55], 0 offen')
    srd(40, 18, 100000*256)
    srd(44, 20, 325*4)
    srd(48, 22, 325*4)
    srd(56, 26, 256)
    srd(60, 28, 256)
    srd(64, 30, 256)
    srd(68, 32, 2048)
    e('s_waitcnt vmcnt(8)')
    for q in range(7):
        e(f'v_lshl_add_u32 v{104+q}, v{96+q}, 8, v12')
        e(f'buffer_load_dwordx4 {vr(112+4*q,4)}, v{104+q}, s[40:43], 0 offen')
    e(f'v_and_b32 v{VLO}, 31, v{LANE}')
    e(f'v_lshlrev_b32 v{VLO}, 2, v{VLO}')
    for t in range(4):
        for g in range(4):
            e(f'buffer_load_dwordx2 {vr(184+8*t+2*g,2)}, v9, s[56:59], 0 offen offset:{2*(32*t+8*g)}')
            e(f'buffer_load_dwordx2 {ar(H+8*t+2*g,2)}, v9, s[60:63], 0 offen offset:{2*(32*t+8*g)}')
    for s in range(8):
        e(f'buffer_load_dwordx4 {vr(56+4*s,4)}, v10, s[64:67], 0 offen offset:{32*s}')
    e(f'buffer_load_dword v{VNI}, v{VLO}, s[44:47], 0 offen')
    e(f'buffer_load_dword v{VNJ}, v{VLO}, s[48:51], 0 offen')
    e('s_waitcnt vmcnt(49)')
    for q in range(8):
        e(f'ds_write_b128 v3, {vr(152+4*q,4)} offset:{4096*q}')
    e('s_waitcnt lgkmcnt(0)')
    e('s_barrier')
    e(f'v_lshrrev_b32 v2, 5, v{LANE}')
    e('v_lshrrev_b32 v3, 2, v11')
    e('v_lshl_add_u32 v2, v2, 3, v3')
    e('v_lshlrev_b32 v2, 8, v2')
    e(f'v_lshrrev_b32 v3, 4, v{LANE}')
    e('v_and_b32 v3, 1, v3')
    e('v_lshlrev_b32 v3, 5, v3')
    e(f'v_and_b32 v4, 3, v{LANE}')
    e('v_lshlrev_b32 v4, 3, v4')
    e('v_add3_u32 v2, v2, v3, v4')
    for t in range(4):
        for s in range(8):
            a = (t*8+s)*4
            e(f'ds_read_b64_tr_b16 {ar(a,2)}, v2 offset:{s*4096+t*64}')
            e(f'ds_read_b64_tr_b16 {ar(a+2,2)}, v2 offset:{s*4096+t*64+1024}')
    stamp()
    e('v_mul_u32_u24 v14, %d, v5' % ROWSTRIDE)
    e('v_lshlrev_b32 v7, 5, v11')
    e('v_add3_u32 v14, v14, v7, s5')
    e('s_waitcnt vmcnt(42)')
    for q in range(7):
        if q == 6:
            e(f'v_cmp_gt_u32 vcc, 32, v{LANE}')
            e('s_and_saveexec_b64 s[8:9], vcc')
        src = 112+4*q
        tb = 16 + 8*(q % 4)
        if q == 4: e('s_waitcnt lgkmcnt(0)')
        for r in range(4):
            e(f'v_lshlrev_b32 v{tb+2*r}, 16, v{src+r}')
            e(f'v_and_b32 v{tb+1+2*r}, 0xffff0000, v{src+r}')
        e(f'ds_write_b128 v14, v[{tb}:{tb+3}] offset:{4*q*ROWSTRIDE}')
        e(f'ds_write_b128 v14, v[{tb+4}:{tb+7}] offset:{4*q*ROWSTRIDE+16}')
    e('s_mov_b64 exec, s[8:9]')
    e('s_waitcnt vmcnt(0) lgkmcnt(0)')
    for t in range(4):
        for g in range(4):
            for r in range(2):
                src = 184+8*t+2*g+r
                e(f'v_lshlrev_b32 v{BIAS+16*t+4*g+2*r}, 16, v{src}')
                e(f'v_and_b32 v{BIAS+16*t+4*g+2*r+1}, 0xffff0000, v{src}')
    e(f'v_lshlrev_b32 v{VHALF32}, 5, v8')
    e(f'v_add_u32 v{VHALF32}, s5, v{VHALF32}')
    stamp()
    for t in range(11):
        e(f'buffer_load_dword a{160+t}, v{VLO}, s[44:47], 0 offen offset:{128*t}')
        e(f'buffer_load_dword a{172+t}, v{VLO}, s[48:51], 0 offen offset:{128*t}')
    e(f'v_and_b32 v2, 31, v{LANE}')
    e('v_min_u32 v2, 25, v2')
    e(f'v_mad_u32_u24 v2, v2, s7, v{VHALF32}')
    for s in range(8):
        e(f'ds_read_b128 {vr(ST,4)}, v2 offset:{64*s}')
        e(f'ds_read_b128 {vr(ST+4,4)}, v2 offset:{64*s+16}')
        for r in range(4):
            e(f'v_lshlrev_b32 v{ST+8+2*r}, 16, v{56+4*s+r}')
            e(f'v_and_b32 v{ST+9+2*r}, 0xffff0000, v{56+4*s+r}')
        e('s_waitcnt lgkmcnt(0)')
        for r in range(4):
            e(f'v_cvt_pk_bf16_f32 v{ST+16+r}, v{ST+2*r}, v{ST+2*r+1}')
        for r in range(8):
            e(f'v_mul_f32 v{ST+r}, v{ST+r}, v{ST+8+r}')
        for r in range(4):
            e(f'v_cvt_pk_bf16_f32 v{ST+20+r}, v{ST+2*r}, v{ST+2*r+1}')
        e('s_nop 1')
        c = '0' if s == 0 else vr(ACC[0],16)
        c = '0' if s == 0 else vr(BF[1],16)
        e(f'v_mfma_f32_32x32x16_bf16 {vr(BF[1],16)}, {vr(ST+20,4)}, {vr(ST+16,4)}, {c}')
    e('s_nop 7')
    e('s_nop 7')
    e(f'v_and_b32 v2, 31, v{LANE}')
    e('v_lshlrev_b32 v2, 2, v2')
    e('v_lshl_add_u32 v2, v8, 9, v2')
    e('v_add_u32 v2, s5, v2')
    for r in range(16):
        i = 8*(r//4) + (r % 4)
        e(f'ds_write_b32 v2, v{BF[1]+r} offset:{QOFF + i*128}')
    e(f'v_mad_u32_u24 v{VOFFI}, v{VNI}, s7, v{VHALF32}')
    e(f'v_mad_u32_u24 v{VOFFJ}, v{VNJ}, s7, v{VHALF32}')
    e('s_mov_b32 s10, 128')
    e(f'buffer_load_dword v{VNI}, v{VLO}, s[44:47], s10 offen')
    e(f'buffer_load_dword v{VNJ}, v{VLO}, s[48:51], s10 offen')
    for x in gen_reads(0, 0): e(x)
    for s in range(8):
        if s < 7:
            for x in gen_reads(s+1, (s+1)&1): e(x)
        e('s_waitcnt lgkmcnt(%d)' % (4 if s < 7 else 0))
        for x in gen_math(s, s&1, 0): e(x)
    e('s_waitcnt vmcnt(0)')
    e(f'v_mad_u32_u24 v{VOFFI}, v{VNI}, s7, v{VHALF32}')
    e(f'v_mad_u32_u24 v{VOFFJ}, v{VNJ}, s7, v{VHALF32}')
    e('s_mov_b32 s10, 256')
    e(f'buffer_load_dword v{VNI}, v{VLO}, s[44:47], s10 offen')
    e(f'buffer_load_dword v{VNJ}, v{VLO}, s[48:51], s10 offen')
    e(f'v_lshlrev_b32 v{VET}, 2, v{LANE}')
    e(f'v_add_u32 v{VET}, s5, v{VET}')
    e(f'v_add_u32 v{VET}, {ETAB-256}, v{VET}')
    e(f'v_mov_b32 v{EACC0}, 0')
    e(f'v_mov_b32 v{EACC1}, 0')
    for r in range(16):
        e(f'v_mov_b32 v{ACC[1]+r}, 0')
    e('s_mov_b32 s11, 0')
    stamp()
    lbl('L_loop')
    tile(0, 1)
    e('s_add_u32 s11, s11, 1')
    e('s_cmp_eq_u32 s11, 6')
    e('s_cbranch_scc1 L_done')
    tile(1, 0)
    e('s_branch L_loop')
    lbl('L_done')
    e('s_nop 7'); e('s_nop 7')
    for x in epilogue(3, 1) + finalize_e(): e(x)
    stamp()
    if DEBUG:
        e('s_waitcnt lgkmcnt(0)')
        e('s_load_dwordx2 s[72:73], s[0:1], 80')
        e('s_waitcnt lgkmcnt(0)')
        srd(76, 72, 1<<24)
        e(f'v_lshlrev_b32 v2, 2, v{LANE}')
        e('v_add_u32 v3, s5, v2')
        e('s_mul_i32 s9, s4, 8192')
        e('v_add_u32 v2, s9, v2')
        for i in range(28):
            e(f'ds_read_b32 v4, v3 offset:{QOFF+256*i}')
            e('s_waitcnt lgkmcnt(0)')
            e(f'buffer_store_dword v4, v2, s[76:79], 0 offen')
            e('s_waitcnt vmcnt(0)')
            e('v_add_u32 v2, 256, v2')
    e(f'v_lshlrev_b32 v2, 2, v{LANE}')
    e('v_add_u32 v2, s5, v2')
    e('s_waitcnt lgkmcnt(0)')
    for t in range(11):
        e(f'ds_read_b32 v{16+t}, v2 offset:{ETAB+256*t}')
    for t in range(11):
        e(f'v_accvgpr_read_b32 v{32+t}, a{160+t}')
        e(f'v_accvgpr_read_b32 v{44+t}, a{172+t}')
    for t in range(11):
        e(f'v_lshlrev_b32 v{32+t}, 7, v{32+t}')
        e(f'v_lshl_add_u32 v{32+t}, v{44+t}, 2, v{32+t}')
        e(f'v_add_u32 v{32+t}, s5, v{32+t}')
        e(f'ds_read_b32 v{44+t}, v{32+t} offset:{QOFF}')
    e(f'v_and_b32 v2, 31, v{LANE}')
    e('v_cmp_gt_u32 vcc, 5, v2')
    e('v_mov_b32 v3, 0xff800000')
    e('s_waitcnt lgkmcnt(0)')
    e(f'v_cndmask_b32 v26, v3, v26, vcc')
    e(f'v_mov_b32 v4, v16')
    for t in range(1, 11):
        e(f'v_max_f32 v4, v4, v{16+t}')
    for m in (1, 2, 4, 8, 16):
        e(f'ds_swizzle_b32 v5, v4 offset:{(m<<10)|0x1f}')
        e('s_waitcnt lgkmcnt(0)')
        e('v_max_f32 v4, v4, v5')
    e('v_mov_b32 v6, 0')
    e('v_mov_b32 v7, 0')
    e('s_mov_b32 s8, 0x3fb8aa3b')
    for t in range(11):
        e(f'v_sub_f32 v5, v{16+t}, v4')
        e('v_mul_f32 v5, s8, v5')
        e('v_exp_f32 v5, v5')
        e('s_nop 1')
        e('v_add_f32 v6, v6, v5')
        e(f'v_fmac_f32 v7, v5, v{44+t}')
    for m in (1, 2, 4, 8, 16):
        e(f'ds_swizzle_b32 v5, v6 offset:{(m<<10)|0x1f}')
        e(f'ds_swizzle_b32 v8, v7 offset:{(m<<10)|0x1f}')
        e('s_waitcnt lgkmcnt(0)')
        e('v_add_f32 v6, v6, v5')
        e('v_add_f32 v7, v7, v8')
    e('v_rcp_f32 v6, v6')
    e('s_nop 1')
    e('v_mul_f32 v7, v7, v6')
    e('v_cvt_pk_bf16_f32 v7, v7, v7')
    e('v_mov_b32 v8, s4')
    e('v_lshlrev_b32 v8, 1, v8')
    e(f'v_cmp_eq_u32 vcc, 0, v{LANE}')
    e('s_and_saveexec_b64 s[8:9], vcc')
    e('buffer_store_short v7, v8, s[68:71], 0 offen')
    if TIMING:
        stamp()
        e('s_load_dwordx2 s[72:73], s[0:1], 80')
        e('s_waitcnt lgkmcnt(0)')
        srd(76, 72, 1<<24)
        e('s_mul_i32 s9, s4, 64')
        e('v_mov_b32 v2, s9')
        for i in range(stampn[0]):
            e(f'v_mov_b32 v3, s{80+2*i}')
            e(f'buffer_store_dword v3, v2, s[76:79], 0 offen offset:{4*i}')
    e('s_waitcnt vmcnt(0)')
    lbl('L_end')

body()
asm = HDR + f'''; @launch grid=(256,1,1) block=(256,1,1) lds={LDS_TOTAL}
.amdgcn_target "amdgcn-amd-amdhsa--gfx950"
.text
.globl standalone__factorization_afm__recsys_kernel
.p2align 8
.type standalone__factorization_afm__recsys_kernel,@function
standalone__factorization_afm__recsys_kernel:
''' + '\n'.join(out) + '''
s_endpgm
.section .rodata,"a"
.p2align 6
.amdhsa_kernel standalone__factorization_afm__recsys_kernel
  .amdhsa_next_free_vgpr 448
  .amdhsa_next_free_sgpr 102
  .amdhsa_accum_offset 256
  .amdhsa_group_segment_fixed_size 0
  .amdhsa_kernarg_size 88
  .amdhsa_user_sgpr_count 2
  .amdhsa_user_sgpr_kernarg_segment_ptr 1
  .amdhsa_system_sgpr_workgroup_id_x 1
.end_amdhsa_kernel
'''
open(sys.argv[1] if len(sys.argv) > 1 else 'standalone__factorization_afm__recsys.s', 'w').write(asm)
```

```python
import re

_REG = re.compile(r'^(-?)\|?([vas])(?:(\d+)|\[(\d+):(\d+)\])\|?$')


def regs_of(op):
    op = op.strip()
    if op in ('vcc', 'exec', 'm0', 'scc'):
        return [op]
    if op in ('vcc_lo', 'vcc_hi'):
        return ['vcc']
    if op in ('exec_lo', 'exec_hi'):
        return ['exec']
    m = _REG.match(op)
    if not m:
        return []
    k = m.group(2)
    if m.group(3) is not None:
        return [k + m.group(3)]
    return [k + str(i) for i in range(int(m.group(4)), int(m.group(5)) + 1)]


TRANS = ('v_exp_f32', 'v_log_f32', 'v_rcp_f32', 'v_rsq_f32', 'v_sqrt_f32')


class Ins:
    def __init__(self, text, tag=None):
        self.text = text
        self.tag = tag
        t = text.split(';')[0].strip()
        self.label = t.endswith(':')
        self.directive = t.startswith('.')
        parts = t.split(None, 1)
        self.op = parts[0] if parts else ''
        rest = parts[1] if len(parts) > 1 else ''
        rest = re.sub(r'(quad_perm|op_sel|op_sel_hi|neg_lo|neg_hi):\[([^\]]*)\]', lambda m: m.group(1) + ':[' + m.group(2).replace(',', '.') + ']', rest)
        ops = [x.strip() for x in rest.split(',')] if rest else []
        mods = ''
        if ops:
            last = ops[-1].split(None, 1)
            ops[-1] = last[0]
            mods = last[1] if len(last) > 1 else ''
        self.ops, self.mods = ops, mods
        self.r, self.w = set(), set()
        self.srcA = self.srcB = self.srcC = ()
        self.kind = 'other'
        self.dppsrc = ()
        op = self.op
        R = lambda i: regs_of(ops[i]) if i < len(ops) else []
        if self.label or self.directive or not op:
            self.kind = 'label'
        elif op.startswith('v_mfma'):
            self.kind = 'mfma'
            self.w = set(R(0)); self.srcA, self.srcB, self.srcC = R(1), R(2), R(3)
            self.r = set(R(1) + R(2) + R(3))
            self.passes = 8 if '32x32' in op else 4
        elif op.startswith('v_smfmac'):
            self.kind = 'mfma'
            self.w = set(R(0)); self.srcA, self.srcB, self.srcC = R(1), R(2) + R(3), R(0)
            self.r = set(R(0) + R(1) + R(2) + R(3))
            self.passes = 8 if '32x32' in op else 4
        elif op.startswith('v_'):
            self.kind = 'valu'
            if op.startswith('v_permlane') and 'swap' in op:
                self.w = set(R(0) + R(1)); self.r = set(R(0) + R(1))
            else:
                self.w = set(R(0))
                for i in range(1, len(ops)):
                    self.r |= set(R(i))
                if op.startswith(('v_fmac', 'v_dot2c', 'v_writelane')):
                    self.r |= set(R(0))
                if op.startswith('v_cndmask') and len(ops) == 3:
                    self.r.add('vcc')
                if op.endswith('_dpp'):
                    self.dppsrc = R(1)
                    if 'row_mask:0xf' not in mods or 'bank_mask:0xf' not in mods or 'row_sh' in mods:
                        self.r |= set(R(0))
            self.r.add('exec')
        elif op.startswith('ds_'):
            self.kind = 'ds'
            if op.startswith(('ds_read', 'ds_bpermute', 'ds_swizzle', 'ds_permute')):
                self.w = set(R(0))
                for i in range(1, len(ops)):
                    self.r |= set(R(i))
            else:
                for i in range(len(ops)):
                    self.r |= set(R(i))
            self.r.add('exec')
        elif op.startswith(('buffer_', 'global_')):
            self.kind = 'vmem'
            lds = ' lds' in (' ' + mods) or '_lds_' in op
            self.lds = lds
            if 'load' in op and not lds:
                self.w = set(R(0))
                for i in range(1, len(ops)):
                    self.r |= set(R(i))
            else:
                for i in range(len(ops)):
                    self.r |= set(R(i))
                if lds:
                    self.r.add('m0')
            self.r.add('exec')
        elif op.startswith(('s_load', 's_memtime', 's_memrealtime', 's_buffer_load')):
            self.kind = 'smem'
            self.w = set(R(0))
            for i in range(1, len(ops)):
                self.r |= set(R(i))
        elif op == 's_waitcnt':
            self.kind = 'wait'
        elif op == 's_nop':
            self.kind = 'nop'
        elif op.startswith('s_'):
            self.kind = 'salu'
            if op.startswith(('s_cmp', 's_cbranch', 's_branch', 's_barrier', 's_endpgm', 's_setprio', 's_sleep')):
                for i in range(len(ops)):
                    self.r |= set(R(i))
            else:
                self.w = set(R(0))
                for i in range(1, len(ops)):
                    self.r |= set(R(i))
                if 'saveexec' in op:
                    self.w.add('exec'); self.r.add('exec')

    def states(self):
        if self.kind == 'label':
            return 0
        if self.kind == 'nop':
            return int(self.ops[0], 0) + 1
        return 1

    def __repr__(self):
        return self.text


def need_states(p, c):
    n = 0
    vw = {x for x in p.w if x[0] in 'va' and x not in ('vcc',)}
    sw = {x for x in p.w if x[0] == 's' or x == 'vcc'}
    if p.kind == 'valu':
        if c.kind == 'mfma' and vw & c.r:
            n = max(n, 2)
        if c.kind == 'valu':
            if vw & set(c.dppsrc):
                n = max(n, 2)
            if c.op.startswith(('v_readlane', 'v_readfirstlane')) and vw & c.r:
                n = max(n, 1)
            if c.op.startswith('v_permlane') and vw & c.r:
                n = max(n, 2)
            if p.op.replace('_e32', '').replace('_e64', '') in TRANS and vw & c.r:
                n = max(n, 1)
            if sw & c.r:
                n = max(n, 4 if c.op.startswith(('v_readlane', 'v_writelane')) else 2)
        if c.kind == 'vmem' and sw & c.r:
            n = max(n, 5)
        if c.kind == 'salu' and sw & c.r:
            n = max(n, 1)
        if 'exec' in p.w:
            n = max(n, 5)
    if p.kind == 'mfma':
        P = p.passes
        full = {4: 8, 8: 12}[P] + (2 if p.op.startswith('v_smfmac') else 0)
        if c.kind == 'mfma':
            if vw & (set(c.srcA) | set(c.srcB)):
                n = max(n, full)
            if vw & set(c.srcC):
                same = set(c.srcC) == vw and c.passes == P
                n = max(n, 0 if same else {4: 6, 8: 10}[P])
            elif vw & c.w:
                n = max(n, {4: 6, 8: 10}[P] if c.passes != P else 0)
        elif c.kind in ('valu', 'ds', 'vmem'):
            if vw & (c.r | c.w):
                n = max(n, full)
            if c.kind == 'valu' and set(p.srcC) & c.w:
                n = max(n, {4: 3, 8: 7}[P])
            if c.kind in ('ds', 'vmem') and set(p.srcC) & c.w:
                n = max(n, {4: 3, 8: 7}[P])
    if p.kind == 'salu' and 'm0' in p.w and c.kind == 'vmem' and 'm0' in c.r:
        n = max(n, 1)
    if p.kind == 'vmem' and 'store' in p.op and ('x4' in p.op or 'x3' in p.op) and c.kind == 'valu' and (p.r & c.w):
        n = max(n, 2)
    return n


def fix_hazards(prog, verbose=False):
    out = []
    ins = 0
    for c in prog:
        if c.kind != 'label':
            dist = 0
            need = 0
            for p in reversed(out):
                if dist >= 16:
                    break
                k = need_states(p, c) - dist
                if k > need:
                    need = k
                    why = p
                dist += p.states()
            if need > 0:
                if verbose:
                    print(f'  nop {need} before [{c.text}] due to [{why.text}]')
                out.append(Ins(f's_nop {need - 1}'))
                ins += need
        out.append(c)
    return out, ins


def check_waitcnt(prog):
    vm, lg = [], []
    errs = []
    for c in prog:
        if c.kind == 'wait':
            m = re.search(r'vmcnt\((\d+)\)', c.text)
            if m:
                n = int(m.group(1))
                vm = vm[len(vm) - n:] if n else []
                if n == 0:
                    vm = []
            m = re.search(r'lgkmcnt\((\d+)\)', c.text)
            if m:
                n = int(m.group(1))
                if n == 0:
                    lg = []
                else:
                    ds = [x for x in lg if x.kind == 'ds']
                    keep = set(id(x) for x in ds[max(0, len(ds) - n):])
                    lg = [x for x in lg if x.kind != 'ds' or id(x) in keep]
            continue
        touched = (c.r | c.w) - {'exec'}
        for q in vm + lg:
            if q.w & touched and not (q.kind == 'smem' and c.kind == 'smem' and q.w == c.w and not (q.w & c.r)):
                errs.append(f'[{c.text}] touches pending dest of [{q.text}]')
        if c.kind == 'vmem':
            vm.append(c)
            if len(vm) > 63:
                errs.append('vmcnt overflow')
        if c.kind in ('ds', 'smem'):
            lg.append(c)
    return errs


class Node:
    def __init__(self, ins, idx):
        self.ins, self.idx = ins, idx
        self.preds = []
        self.succs = []
        self.pos = None
        self.prio = None
        self.earliest = 0
        self.info = None


def build_dag(seq, extra_edges=()):
    nodes = [Node(x, i) for i, x in enumerate(seq)]
    lastw, readers = {}, {}
    for n in nodes:
        ps = set()
        for r in n.ins.r - {'exec'}:
            if r in lastw:
                ps.add(lastw[r])
        for w in n.ins.w:
            if w in lastw:
                ps.add(lastw[w])
            for q in readers.get(w, ()):
                if q is not n:
                    ps.add(q)
        for p in ps:
            n.preds.append((p, need_states(p.ins, n.ins)))
            p.succs.append(n)
        for r in n.ins.r - {'exec'}:
            readers.setdefault(r, []).append(n)
        for w in n.ins.w:
            lastw[w] = n
            readers[w] = []
    byins = {id(n.ins): n for n in nodes}
    for a, b, d in extra_edges:
        byins[id(b)].preds.append((byins[id(a)], d))
        byins[id(a)].succs.append(byins[id(b)])
    return nodes, byins
```

```python
import sys, os
sys.path.insert(0, os.path.dirname(os.path.abspath(__file__)))
from asmlib import Ins, fix_hazards, check_waitcnt, build_dag

OUT = sys.argv[1] if len(sys.argv) > 1 else 'standalone__factorization_afm__recsys.s'
OPTS = set(sys.argv[2].split(',')) if len(sys.argv) > 2 else set()
TIMING = 'time' in OPTS
VERB = 'v' in OPTS
def optval(name, default):
    for o in OPTS:
        if o.startswith(name + '='):
            return int(o.split('=')[1])
    return default

HDR = open('standalone__factorization_afm__recsys.s.ref').read().split('; Override launch')[0]

XF = list(range(16))
YF = [22, 23, 17, 23, 25, 18, 24, 19, 21, 20, 23, 25, 24, 22, 16, 21]
ZF = [23, 20, 20, 16, 22, 19, 21, 16, 17, 18, 22, 18, 25, 24, 17, 19]
def pat(p):
    if p == 'id': return list(range(16))
    k, v = p.split(':'); v = int(v)
    return [(n - v) % 16 for n in range(16)] if k == 'row_ror' else [v] * 16
TILES = [('X', 'X', f'row_ror:{r}') for r in range(1, 9)]
TILES += [('X', 'Y', f'row_newbcast:{YF.index(f)}') for f in range(16, 26)]
TILES += [('Y', 'Z', 'row_ror:13'), ('Y', 'Z', 'row_ror:5'), ('Y', 'Z', 'id')]
NT = len(TILES)
FS = {'X': XF, 'Y': YF, 'Z': ZF}
seen = set(); VALID = []
for a, b, p in TILES:
    v = []
    for n in range(16):
        i, j = FS[a][n], FS[b][pat(p)[n]]
        assert i != j
        key = (min(i, j), max(i, j))
        v.append(key not in seen); seen.add(key)
    VALID.append(v)
assert len(seen) == 325 and sum(map(sum, VALID)) == 325
NG = (NT + 3) // 4
def group_mask(G):
    m = 0
    for c in range(4):
        t = 4 * G + c
        for n in range(16):
            if t < NT and VALID[t][n]: m |= 1 << (16 * c + n)
    return m

ROWS = 32768; ROWB = 7168
VEC = ROWS + 4 * ROWB
VH, VZ0, VU, VP, VZ1, VB = VEC, VEC + 256, VEC + 512, VEC + 768, VEC + 1024, VEC + 1792
LDS_TOTAL = VEC + 2304

SIDX = 1
YA, ZA = 2, 6
VC, VOFF, VM, VT0, VT1, VT2 = 10, 11, 12, 13, 14, 15
RS = {'X': 16, 'Y': 48, 'Z': 80}
BIAS, BF, ACC, PK, PR, DD = 112, [144, 160], 176, 208, 224, 232
def vr(a, n=1): return f'v{a}' if n == 1 else f'v[{a}:{a+n-1}]'
def ar(a, n=1): return f'a{a}' if n == 1 else f'a[{a}:{a+n-1}]'
def WF(t, s): return ar(16 * t + 4 * s, 4)
def SF(c, k): return ar(128 + 16 * c + 4 * k, 4)
FULL = ' row_mask:0xf bank_mask:0xf'

prog = []
def e(s, tag=None):
    x = Ins(s, tag); prog.append(x); return x
stampn = [0]
def stamp(real=False):
    if TIMING:
        e(f's_mem{"real" if real else ""}time s[{60+2*stampn[0]}:{61+2*stampn[0]}]'); stampn[0] += 1

def nib(F):
    lo = sum((F[n] - 16) << (4 * n) for n in range(8)); hi = sum((F[n + 8] - 16) << (4 * n) for n in range(8))
    return lo, hi

def prologue():
    T = iter(range(48, 80))
    vN, vG, vK, vIO, vIO6, vWG, vK4, vHB = [next(T) for _ in range(8)]
    vCS = [next(T) for _ in range(4)]
    vWW = [next(T) for _ in range(4)]
    vCL = [next(T) for _ in range(4)]
    vAH, vAP, vAU, vAB, vAZ, vBR, vTRB, t0, t1, t2, vPF = [next(T) for _ in range(11)]
    vIDX = list(range(PK, PK + 7))
    vXA = list(range(PK + 8, PK + 12))
    vSH, vSP, vSB, vSB2 = PK + 12, PK + 13, PK + 14, PK + 15
    WRAW = RS['Z']; HB = BF[0]; UA = ACC; ZER = BF[1]
    vTR = list(range(PR, PR + 8))

    stamp(True); stamp()
    e('s_load_dwordx16 s[16:31], s[0:1], 0')
    e('s_load_dwordx2 s[36:37], s[0:1], 64')
    if TIMING: e('s_load_dwordx2 s[56:57], s[0:1], 80')
    e('s_cmp_ge_u32 s2, 256')
    e('s_cbranch_scc1 L_end')
    e('s_getpc_b64 s[10:11]')
    e('L_pc:')
    e(f'v_lshlrev_b32 v{t0}, 7, v0')
    e(f'v_min_u32 v{t0}, L_end-L_pc, v{t0}')
    e(f'global_load_dword v{vPF}, v{t0}, s[10:11]')
    e(f'v_lshrrev_b32 v{t1}, 6, v0')
    e(f'v_and_b32 v{vN}, 15, v0')
    e(f'v_readfirstlane_b32 s3, v{t1}')
    e(f'v_bfe_u32 v{vG}, v0, 4, 2')
    e(f'v_and_b32 v{vK}, 63, v0')
    e('s_lshl_b32 s4, s2, 2')
    e('s_add_u32 s4, s4, s3')
    e('s_mul_i32 s6, s4, 104')
    e(f'v_lshl_add_u32 v{vIO}, v{vG}, 2, s6')
    e(f'v_min_u32 v{vIO6}, 1, v{vG}')
    e(f'v_lshl_add_u32 v{vIO6}, v{vIO6}, 2, s6')
    e('s_lshl_b32 s7, s3, 13')
    e(f'v_lshlrev_b32 v{vHB}, 4, v{vG}')
    e(f'v_lshl_add_u32 v{vWG}, v{vN}, 8, v{vHB}')
    e('s_add_u32 s8, s7, 4096')
    e(f'v_add_u32 v{vWG}, s8, v{vWG}')
    e(f'v_lshlrev_b32 v{vK4}, 2, v{vK}')
    e(f's_mul_i32 s5, s3, {ROWB}')
    e(f's_add_u32 s5, s5, {ROWS}')
    e('s_mov_b32 s42, 25600000'); e('s_mov_b32 s43, 0x00020000')
    e('s_mov_b32 s38, 2048'); e('s_mov_b32 s39, 0x00020000')
    e(f'v_xor_b32 v{t0}, v{vN}, v{vG}')
    e(f'v_lshlrev_b32 v{vCS[0]}, 4, v{t0}')
    for k in range(1, 4): e(f'v_xor_b32 v{vCS[k]}, {64*k}, v{vCS[0]}')
    e(f'v_lshl_add_u32 v{vXA[0]}, v{vN}, 8, v{vCS[0]}')
    e(f'v_add_u32 v{vXA[0]}, s5, v{vXA[0]}')
    for k in range(1, 4): e(f'v_xor_b32 v{vXA[k]}, {64*k}, v{vXA[0]}')
    e(f'v_and_b32 v{t0}, 3, v{vN}')
    e(f'v_lshrrev_b32 v{t1}, 3, v{vN}')
    e(f'v_lshl_add_u32 v{t0}, v{t1}, 2, v{t0}')
    e(f'v_lshlrev_b32 v{t0}, 1, v{t0}')
    e(f'v_xor_b32 v{t0}, v{t0}, v{vG}')
    e(f'v_lshlrev_b32 v{t0}, 4, v{t0}')
    e(f'v_lshl_add_u32 v{t0}, v{vN}, 8, v{t0}')
    e(f'v_add_u32 v{vWW[0]}, s7, v{t0}')
    for k in range(1, 4): e(f'v_xor_b32 v{vWW[k]}, {64*k}, v{vWW[0]}')
    e('s_waitcnt lgkmcnt(0)')
    stamp()
    for q in range(6):
        e(f'global_load_dword v{vIDX[q]}, v{vIO}, s[16:17] offset:{16*q} nt')
    e(f'global_load_dword v{vIDX[6]}, v{vIO6}, s[16:17] offset:96 nt')
    for Tt in range(2):
        for s in range(4):
            e(f'global_load_dwordx4 {vr(WRAW+16*Tt+4*s,4)}, v{vWG}, s[24:25] offset:{4096*(Tt-1)+64*s}')
    for s in range(4):
        e(f'global_load_dwordx4 {vr(HB+4*s,4)}, v{vHB}, s[28:29] offset:{64*s}')
    e(f'global_load_dword v{vSH}, v{vK4}, s[28:29]')
    e(f'global_load_dword v{vSP}, v{vK4}, s[30:31]')
    e(f'global_load_dword v{vSB2}, v{vK4}, s[26:27]')
    e('s_mov_b32 s40, s18'); e('s_mov_b32 s41, s19')
    e(f'v_lshrrev_b32 v{t0}, 2, v{vN}')
    e(f'v_lshl_add_u32 v{t1}, v{vG}, 3, v{t0}')
    e(f'v_lshlrev_b32 v{t1}, 8, v{t1}')
    e(f'v_and_b32 v{t2}, 1, v{vG}')
    e(f'v_lshl_add_u32 v{t2}, v{t2}, 2, v{t0}')
    e(f'v_lshl_add_u32 v{t1}, v{t2}, 5, v{t1}')
    e(f'v_and_b32 v{t2}, 3, v{vN}')
    e(f'v_lshl_add_u32 v{vTR[0]}, v{t2}, 3, v{t1}')
    for t in range(1, 8): e(f'v_xor_b32 v{vTR[t]}, {32*t}, v{vTR[0]}')
    e(f'v_and_b32 v{t0}, 1, v{vK}')
    e(f'v_lshlrev_b32 v{t0}, 2, v{t0}')
    e(f'v_bfe_u32 v{t1}, v{vK}, 1, 2')
    e(f'v_and_b32 v{t2}, 0x38, v{vK}')
    e(f'v_or3_b32 v{t1}, v{t0}, v{t1}, v{t2}')
    e(f'v_lshlrev_b32 v{vAP}, 2, v{t1}')
    e(f'v_and_b32 v{t1}, 0x32, v{vK}')
    e(f'v_bfe_u32 v{t2}, v{vK}, 3, 1')
    e(f'v_or3_b32 v{t0}, v{t0}, v{t1}, v{t2}')
    e(f'v_and_b32 v{t1}, 4, v{vK}')
    e(f'v_lshl_or_b32 v{t0}, v{t1}, 1, v{t0}')
    e(f'v_lshlrev_b32 v{vAH}, 2, v{t0}')
    e(f'v_and_b32 v{t0}, 2, v{vN}')
    e(f'v_lshlrev_b32 v{t0}, 3, v{t0}')
    e(f'v_and_b32 v{t1}, 12, v{vN}')
    e(f'v_and_b32 v{t2}, 1, v{vN}')
    e(f'v_lshl_or_b32 v{t0}, v{t2}, 1, v{t0}')
    e('s_lshl_b32 s8, s3, 6')
    e(f'v_or3_b32 v{vAU}, v{t0}, v{t1}, s8')
    e('s_mov_b32 s12, 0xaaaa')
    e(f'v_mov_b32 v{SIDX}, 0x4444')
    e(f'v_mad_u32_u24 v{SIDX}, v{t2}, s12, v{SIDX}')
    e(f'v_lshlrev_b32 v{t2}, 4, v{t2}')
    e(f'v_lshl_or_b32 v{t2}, v{vG}, 5, v{t2}')
    e(f'v_and_b32 v{t0}, 2, v{vN}')
    e(f'v_lshl_or_b32 v{t2}, v{t0}, 7, v{t2}')
    e(f'v_lshrrev_b32 v{t0}, 2, v{vN}')
    e(f'v_mov_b32 v{t1}, 1024')
    for c in range(4):
        e(f'v_cmp_eq_u32 s[{44+2*c}:{45+2*c}], {c}, v{t0}')
    for c in range(4):
        e(f'v_cndmask_b32 v{vCL[c]}, v{t1}, v{t2}, s[{44+2*c}:{45+2*c}]')
    e(f'v_lshlrev_b32 v{vAB}, 3, v{vK}')
    e(f'v_min_u32 v{t0}, 1, v{vG}')
    e(f'v_lshlrev_b32 v{t0}, 9, v{t0}')
    e(f'v_lshl_add_u32 v{vAZ}, v{vK}, 4, v{t0}')
    for r in range(4): e(f'v_mov_b32 v{ZER+r}, 0')
    e(f'ds_write_b128 v{vAZ}, {vr(ZER,4)} offset:{VZ0}')
    e('s_waitcnt vmcnt(15)')
    stamp()
    for q in range(7):
        e(f's_add_u32 m0, s5, {1024*q}')
        e(f'v_lshl_add_u32 v{vIDX[q]}, v{vIDX[q]}, 8, v{vCS[q%4]}')
        e(f'buffer_load_dwordx4 v{vIDX[q]}, s[40:43], 0 offen nt lds')
    stamp()
    e('s_waitcnt vmcnt(14)')
    for Tt in range(2):
        for s in range(4):
            e(f'ds_write_b128 v{vWW[s]}, {vr(WRAW+16*Tt+4*s,4)} offset:{4096*Tt}')
    e('s_waitcnt vmcnt(10)')
    for Tt in range(2):
        for s in range(4):
            c = '0' if s == 0 else vr(UA+4*Tt, 4)
            e(f'v_mfma_f32_16x16x32_bf16 {vr(UA+4*Tt,4)}, {vr(HB+4*s,4)}, {vr(WRAW+16*Tt+4*s,4)}, {c}')
    e('s_waitcnt vmcnt(7)')
    e(f'ds_write_b32 v{vAH}, v{vSH} offset:{VH}')
    e(f'ds_write_b32 v{vAP}, v{vSP} offset:{VP}')
    e(f'v_lshlrev_b32 v{vSB}, 16, v{vSB2}')
    e(f'v_and_b32 v{vSB2}, 0xffff0000, v{vSB2}')
    e(f'ds_write_b64 v{vAB}, {vr(vSB,2)} offset:{VB}')
    e(f'v_and_b32 v{t0}, 7, v{vN}')
    e(f'v_lshlrev_b32 v{t0}, 2, v{t0}')
    e(f'v_cmp_gt_u32 vcc, 8, v{vN}')
    e(f'v_cvt_pk_bf16_f32 v{t2}, v{UA}, v{UA+4}')
    e(f'ds_write_b16 v{vAU}, v{t2} offset:{VU}')
    e(f'ds_write_b16_d16_hi v{vAU}, v{t2} offset:{VU+32}')
    e('s_add_u32 s8, s5, 4096')
    e('s_waitcnt lgkmcnt(0)')
    e('s_barrier')
    stamp()
    for s in range(4):
        for t in range(8):
            for hh in range(2):
                e(f'ds_read_b64_tr_b16 {ar(16*t+4*s+2*hh,2)}, v{vTR[t]} offset:{8192*s+1024*hh}')
        if s == 0:
            for t in range(8):
                e(f'ds_read_b128 {vr(BIAS+4*t,4)}, v{vHB} offset:{VB+64*t}')
    for c in range(4):
        for k in range(4):
            e(f'ds_read_b128 {SF(c,k)}, v{vCL[c]} offset:{VEC + 128*(k&1) + 512*(k>>1)}')
    for F, A in ((YF, YA), (ZF, ZA)):
        lo, hi = nib(F)
        e(f'v_mov_b32 v{t1}, {hi:#x}')
        e(f'v_mov_b32 v{t2}, {lo:#x}')
        e(f'v_cndmask_b32 v{t1}, v{t1}, v{t2}, vcc')
        e(f'v_bfe_u32 v{t1}, v{t1}, v{t0}, 4')
        e(f'v_xor_b32 v{t2}, v{t1}, v{vG}')
        e(f'v_lshlrev_b32 v{t2}, 4, v{t2}')
        e(f'v_lshl_add_u32 v{t2}, v{t1}, 8, v{t2}')
        e(f'v_add_u32 v{A}, s8, v{t2}')
        for k in range(1, 4): e(f'v_xor_b32 v{A+k}, {64*k}, v{A}')
    e(f'v_mov_b32 v{t1}, 0xff800000')
    for G in range(NG):
        m = group_mask(G)
        if m == (1 << 64) - 1:
            e(f'v_mov_b32 v{DD+4*G}, 0')
        else:
            e(f's_mov_b32 s12, {m & 0xffffffff:#x}'); e(f's_mov_b32 s13, {m >> 32:#x}')
            e(f'v_cndmask_b32 v{DD+4*G}, v{t1}, 0, s[12:13]')
        for r in range(1, 4): e(f'v_mov_b32 v{DD+4*G+r}, 0')
    e(f'v_mov_b32 v{VC}, 0x3f38aa3b')
    e(f'v_cmp_eq_u32 vcc, 63, v{vK}')
    e('s_lshl_b32 s8, s4, 1')
    e(f'v_mov_b32 v{t0}, s8')
    e(f'v_mov_b32 v{t1}, 0x7ffffff0')
    e(f'v_cndmask_b32 v{VOFF}, v{t1}, v{t0}, vcc')
    if TIMING:
        e('s_waitcnt lgkmcnt(0)')
        stamp()
    return vXA

def main_phase(vXA):
    seq = []; edges = []; mem = []
    def a(s, info=None):
        x = Ins(s); x.info = info; seq.append(x); return x
    def load_set(S, addrs, vmw, earliest, lat):
        base = RS[S]
        w = a(f's_waitcnt vmcnt({vmw})', ('early', earliest)); mem.append(w)
        rd = [a(f'ds_read_b128 {vr(base+16+4*s,4)}, v{addrs[s]}') for s in range(4)]
        mem.extend(rd)
        if lat:
            wl = a('s_waitcnt lgkmcnt(0)'); mem.append(wl); edges.append((rd[3], wl, lat))
        for s in range(4):
            if not lat:
                wl = a(f's_waitcnt lgkmcnt({3-s})'); mem.append(wl)
            for i in range(4 * s, 4 * s + 4):
                x = a(f'v_lshlrev_b32 v{base+2*i}, 16, v{base+16+i}'); edges.append((wl, x, 0))
                x = a(f'v_and_b32 v{base+2*i+1}, 0xffff0000, v{base+16+i}'); edges.append((wl, x, 0))
    prn = [0]
    def gen(t):
        P, Dp, p = TILES[t]
        for s in range(4):
            for i in range(4):
                q = PR + 2 * (prn[0] % 4); prn[0] += 1
                for h in range(2):
                    r = 8 * s + 2 * i + h
                    if p == 'id': a(f'v_mul_f32 v{q+h}, v{RS[Dp]+r}, v{RS[P]+r}')
                    else: a(f'v_mul_f32_dpp v{q+h}, v{RS[Dp]+r}, v{RS[P]+r} {p}{FULL}')
                a(f'v_cvt_pk_bf16_f32 v{BF[t&1]+4*s+i}, v{q}, v{q+1}')
    load_set('X', vXA, 3, 0, 0)
    for t in range(NT):
        if t == 8: load_set('Y', [YA + k for k in range(4)], 0, optval('ye', 50), 24)
        if t == 18: load_set('Z', [ZA + k for k in range(4)], 0, optval('ze', 300), 24)
        gen(t)
        G, c = t // 4, t % 4
        d = vr(DD + 4 * G, 4)
        for k in range(2):
            a(f'v_smfmac_f32_16x16x64_bf16 {d}, {SF(c,2+k)}, {vr(BF[t&1]+8*k,8)}, v{SIDX}', ('S', t, 36 * t + 18 + 9 * k))
        for m in range(8):
            acc = vr(ACC + 4 * m, 4)
            for s in range(4):
                cc = vr(BIAS + 4 * m, 4) if s == 0 else acc
                a(f'v_mfma_f32_16x16x32_bf16 {acc}, {WF(m,s)}, {vr(BF[t&1]+4*s,4)}, {cc}', ('M', t, m, s, 36 * t + 9 * s + m))
            for h in range(2):
                a(f'v_cvt_pk_bf16_f32 v{PK+2*m+h}, |v{ACC+4*m+2*h}|, |v{ACC+4*m+2*h+1}|')
            if m % 4 == 3:
                k = m // 4
                a(f'v_smfmac_f32_16x16x64_bf16 {d}, {SF(c,k)}, {vr(PK+8*k,8)}, v{SIDX}', ('S', t, 36 * t + 40 + 4 * k))
        if c == 3 or t == NT - 1:
            a(f'v_add_f32 v{DD+4*G}, v{DD+4*G}, v{DD+4*G+1}')
            a(f'v_add_f32 v{DD+4*G+2}, v{DD+4*G+2}, v{DD+4*G+3}')
            if G == 2: a(f'v_max3_f32 v{VM}, v{DD}, v{DD+4}, v{DD+8}')
            if G == 4: a(f'v_max3_f32 v{VM}, v{VM}, v{DD+12}, v{DD+16}')
    for x, y in zip(mem, mem[1:]): edges.append((x, y, 0))
    nodes, byins = build_dag(seq, edges)
    BIG = 10 ** 6
    for n in reversed(nodes):
        inf = n.ins.info
        if n.ins.kind == 'mfma': n.prio = inf[-1]
        else: n.prio = min([s.prio for s in n.succs], default=BIG)
        if inf and inf[0] == 'early': n.earliest = inf[1]
    pend_m = [n for n in nodes if n.ins.kind == 'mfma']
    pend_v = sorted([n for n in nodes if n.ins.kind != 'mfma'], key=lambda n: (n.prio, n.idx))
    pos = 0; t = 0; pipe = 0; nm = 0; last = None; out = []; nops = 0; tile_t = {}
    def ready(n):
        return n.earliest <= nm and all(p.pos is not None and pos - p.pos - 1 >= d for p, d in n.preds)
    def pick_m():
        win = pend_m[:80]
        rd = [n for n in win if ready(n)]
        if not rd: return None
        if last is not None and last[0] == 'M' and last[3] < 3:
            for n in rd:
                i = n.ins.info
                if i[0] == 'M' and i[1:3] == last[1:3]: return n
        sm = [n for n in rd if n.ins.info[0] == 'S']
        mm = [n for n in rd if n.ins.info[0] == 'M']
        if sm and not (last is not None and last[0] == 'S' and mm): return sm[0]
        return min(mm, key=lambda n: n.ins.info[1:4])
    def pick_v():
        for n in pend_v[:400]:
            if ready(n): return n
        return None
    while pend_m or pend_v:
        m = pick_m(); v = None
        if m is None or t < pipe: v = pick_v()
        if v is not None:
            v.pos = pos; pend_v.remove(v); out.append(v.ins); pos += 1; t += 4
        elif m is not None:
            t = max(t, pipe)
            m.pos = pos; pend_m.remove(m); out.append(m.ins); pos += 1
            pipe = t + 16; t += 8; nm += 1; last = m.ins.info
            tile_t.setdefault(last[1], t)
        else:
            out.append(Ins('s_nop 0')); pos += 1; t += 4; nops += 1
    if VERB:
        print('model cycles', t, 'nops', nops, 'tile starts', [tile_t[k] for k in sorted(tile_t)])
    for x in out:
        if x.kind == 'nop' and prog[-1].kind == 'nop' and int(prog[-1].ops[0]) < 15:
            prog[-1] = Ins(f's_nop {int(prog[-1].ops[0]) + 1}')
        else:
            prog.append(x)
            if TIMING and x.text.startswith('s_waitcnt vmcnt(3)'): stamp()

def tail():
    E = lambda G: DD + 4 * G
    Q = lambda G: DD + 4 * G + 2
    stamp()
    e(f'v_max_f32 v{VM}, v{VM}, v{E(5)}')
    for r in (8, 4, 2, 1):
        e(f'v_max_f32_dpp v{VM}, v{VM}, v{VM} row_ror:{r}{FULL}')
    e(f'v_max_f32_dpp v{VM}, v{VM}, v{VM} row_bcast:15 row_mask:0xa bank_mask:0xf')
    e(f'v_max_f32_dpp v{VM}, v{VM}, v{VM} row_bcast:31 row_mask:0xc bank_mask:0xf')
    e(f'v_readlane_b32 s14, v{VM}, 63')
    e(f'v_mul_f32 v{VT0}, s14, v{VC}')
    for G in range(NG):
        e(f'v_fma_f32 v{E(G)}, v{E(G)}, v{VC}, -v{VT0}')
    for G in range(NG):
        e(f'v_exp_f32 v{E(G)}, v{E(G)}')
    e(f'v_add_f32 v{VT1}, v{E(0)}, v{E(1)}')
    e(f'v_mul_f32 v{VT2}, v{E(0)}, v{Q(0)}')
    e(f'v_fmac_f32 v{VT2}, v{E(1)}, v{Q(1)}')
    for G in range(2, NG):
        e(f'v_add_f32 v{VT1}, v{VT1}, v{E(G)}')
        e(f'v_fmac_f32 v{VT2}, v{E(G)}, v{Q(G)}')
    for r in (8, 4, 2, 1):
        e(f'v_add_f32_dpp v{VT1}, v{VT1}, v{VT1} row_ror:{r}{FULL}')
        e(f'v_add_f32_dpp v{VT2}, v{VT2}, v{VT2} row_ror:{r}{FULL}')
    for b, mk in ((15, '0xa'), (31, '0xc')):
        e(f'v_add_f32_dpp v{VT1}, v{VT1}, v{VT1} row_bcast:{b} row_mask:{mk} bank_mask:0xf')
        e(f'v_add_f32_dpp v{VT2}, v{VT2}, v{VT2} row_bcast:{b} row_mask:{mk} bank_mask:0xf')
    e(f'v_rcp_f32 v{VT1}, v{VT1}')
    e(f'v_mul_f32 v{VT2}, v{VT2}, v{VT1}')
    e(f'v_cvt_pk_bf16_f32 v{VT2}, v{VT2}, v{VT2}')
    e(f'buffer_store_short v{VT2}, v{VOFF}, s[36:39], 0 offen')
    if TIMING:
        stamp(); stamp(True)
        e('s_waitcnt lgkmcnt(0)')
        e('s_mov_b32 s58, 0x1000000'); e('s_mov_b32 s59, 0x00020000')
        e('s_mul_i32 s9, s4, 64')
        e(f'v_mov_b32 v{VT0}, s9')
        e(f'v_mov_b32 v{VT1}, 0x7ffffff0')
        e(f'v_cndmask_b32 v{VT0}, v{VT1}, v{VT0}, vcc')
        for i in range(stampn[0]):
            e(f'v_mov_b32 v{VT1}, s{60+2*i}')
            e(f'buffer_store_dword v{VT1}, v{VT0}, s[56:59], 0 offen offset:{4*i}')
    e('L_end:')

vXA = prologue()
n_pro = len(prog)
main_phase(vXA)
tail()
prog, nins = fix_hazards(prog, VERB)
errs = check_waitcnt(prog)
assert not errs, '\n'.join(errs[:20])
if VERB: print('instructions', len(prog), 'inserted states', nins, 'stamps', stampn[0])

body = '\n'.join(x.text if x.kind == 'label' else '    ' + x.text for x in prog)
asm = HDR + f'''; @launch grid=(256,1,1) block=(256,1,1) lds={LDS_TOTAL}
.amdgcn_target "amdgcn-amd-amdhsa--gfx950"
.text
.globl standalone__factorization_afm__recsys_kernel
.p2align 8
.type standalone__factorization_afm__recsys_kernel,@function
standalone__factorization_afm__recsys_kernel:
''' + body + '''
s_endpgm
.section .rodata,"a"
.p2align 6
.amdhsa_kernel standalone__factorization_afm__recsys_kernel
  .amdhsa_next_free_vgpr 448
  .amdhsa_next_free_sgpr 102
  .amdhsa_accum_offset 256
  .amdhsa_group_segment_fixed_size 0
  .amdhsa_kernarg_size 88
  .amdhsa_user_sgpr_count 2
  .amdhsa_user_sgpr_kernarg_segment_ptr 1
  .amdhsa_system_sgpr_workgroup_id_x 1
  .amdhsa_float_denorm_mode_32 3
.end_amdhsa_kernel
'''
open(OUT, 'w').write(asm)
```

```python
import sys, os
sys.path.insert(0, os.path.dirname(os.path.abspath(__file__)))
from asmlib import Ins, fix_hazards, check_waitcnt, build_dag

OUT = sys.argv[1] if len(sys.argv) > 1 else 'standalone__factorization_afm__recsys.s'
OPTS = set(sys.argv[2].split(',')) if len(sys.argv) > 2 else set()
TIMING = 'time' in OPTS
VERB = 'v' in OPTS
def optval(name, default):
    for o in OPTS:
        if o.startswith(name + '='):
            return int(o.split('=')[1])
    return default

HDR = open('standalone__factorization_afm__recsys.s.ref').read().split('; Override launch')[0]

XF = list(range(16))
YF = [22, 23, 17, 23, 25, 18, 24, 19, 21, 20, 23, 25, 24, 22, 16, 21]
ZF = [23, 20, 20, 16, 22, 19, 21, 16, 17, 18, 22, 18, 25, 24, 17, 19]
def pat(p):
    if p == 'id': return list(range(16))
    k, v = p.split(':'); v = int(v)
    return [(n - v) % 16 for n in range(16)] if k == 'row_ror' else [v] * 16
TILES = [('X', 'X', f'row_ror:{r}') for r in range(1, 8)]
TILES += [('X', 'Y', f'row_newbcast:{YF.index(f)}') for f in range(16, 26)]
TILES += [('Y', 'Z', 'row_ror:13'), ('Y', 'Z', 'row_ror:5'), ('Y', 'Z', 'id')]
TILES += [('X', 'X', 'row_ror:8')]
TY, TZ = 7, 17
NT = len(TILES)
FS = {'X': XF, 'Y': YF, 'Z': ZF}
seen = set(); VALID = []
for a, b, p in TILES:
    v = []
    for n in range(16):
        i, j = FS[a][n], FS[b][pat(p)[n]]
        assert i != j
        key = (min(i, j), max(i, j))
        v.append(key not in seen); seen.add(key)
    VALID.append(v)
assert len(seen) == 325 and sum(map(sum, VALID)) == 325
NG = (NT + 3) // 4
def group_mask(G):
    m = 0
    for c in range(4):
        t = 4 * G + c
        for n in range(16):
            if t < NT and VALID[t][n]: m |= 1 << (16 * c + n)
    return m

WWAVE = 8704
VEC = 4 * WWAVE
ROWS = VEC + 2560; ROWB = 7168
VH, VZ0, VU, VP, VZ1, VB, VHN = VEC, VEC + 256, VEC + 512, VEC + 768, VEC + 1024, VEC + 1792, VEC + 2304
LDS_TOTAL = ROWS + 4 * ROWB

SIDX = 1
YA, ZA = 2, 6
VC, VOFF, VM, VT0, VT1, VT2 = 10, 11, 12, 13, 14, 15
RS = {'X': 16, 'Y': 48, 'Z': 80}
BIAS, BF, ACC, PK, PR, DD = 112, [144, 160], 176, 208, 224, 232
def vr(a, n=1): return f'v{a}' if n == 1 else f'v[{a}:{a+n-1}]'
def ar(a, n=1): return f'a{a}' if n == 1 else f'a[{a}:{a+n-1}]'
def WF(t, s): return ar(16 * t + 4 * s, 4)
def SF(c, k): return ar(128 + 16 * c + 4 * k, 4)
FULL = ' row_mask:0xf bank_mask:0xf'

prog = []
def e(s, tag=None):
    x = Ins(s, tag); prog.append(x); return x
stampn = [0]
def stamp(real=False, kind='p'):
    mode = 't' if 'tt' in OPTS else 'q' if 'tq' in OPTS else 'r' if 'tr' in OPTS else 'p'
    if TIMING and (real or kind == 'a' or mode in kind):
        e(f's_mem{"real" if real else ""}time s[{60+2*stampn[0]}:{61+2*stampn[0]}]'); stampn[0] += 1

POS = [16, 17, 18, 19, 20, 21, 23, 24, 25, 27]
def nib(F):
    P = [POS[f - 16] - 16 for f in F]
    lo = sum(P[n] << (4 * n) for n in range(8)); hi = sum(P[n + 8] << (4 * n) for n in range(8))
    return lo, hi

def prologue():
    T = iter(range(48, 80))
    vN, vG, vK, vIO, vK4, vHB, vWD = [next(T) for _ in range(7)]
    vCS = [next(T) for _ in range(4)]
    vWW = [next(T) for _ in range(4)]
    vAH, vAP, vAU, vAB, vAZ, t0, t1, t2, vPF = [next(T) for _ in range(9)]
    vCL = [VM, VT0, VT1, VT2]
    vIDX = list(range(PK, PK + 7))
    vXA = list(range(PK + 8, PK + 12))
    vSH, vSP, vSB, vSB2 = PK + 12, PK + 13, PK + 14, PK + 15
    WRAW = RS['Z']; HB = BF[0]; UA = ACC; ZER = BF[1]
    vTR = list(range(PR, PR + 8))

    M = []
    m = M.append
    m('s_mov_b32 s38, 2048'); m('s_mov_b32 s39, 0x00020000')
    m(f'v_lshlrev_b32 v{vHB}, 4, v{vG}')
    m(f'v_and_b32 v{t0}, 3, v{vN}')
    m(f'v_lshlrev_b32 v{t0}, 1, v{t0}')
    m(f'v_xor_b32 v{t0}, v{t0}, v{vG}')
    m(f'v_lshlrev_b32 v{t0}, 4, v{t0}')
    m(f'v_lshrrev_b32 v{t1}, 3, v{vN}')
    m(f'v_lshlrev_b32 v{t1}, 7, v{t1}')
    m(f'v_lshl_add_u32 v{t1}, v{vN}, 8, v{t1}')
    m(f'v_add_u32 v{t1}, s9, v{t1}')
    m(f'v_add_u32 v{vWW[0]}, v{t0}, v{t1}')
    for k in range(1, 4):
        m(f'v_xor_b32 v{t2}, {64*k}, v{t0}')
        m(f'v_add_u32 v{vWW[k]}, v{t2}, v{t1}')
    m(f'v_lshrrev_b32 v{t0}, 2, v{vN}')
    m(f'v_mul_u32_u24 v{t1}, {2048+128}, v{vG}')
    m(f'v_lshl_add_u32 v{t1}, v{t0}, 8, v{t1}')
    m(f'v_and_b32 v{t2}, 3, v{vN}')
    m(f'v_lshl_add_u32 v{t1}, v{t2}, 3, v{t1}')
    m(f'v_lshlrev_b32 v{t0}, 5, v{t0}')
    for t in range(4):
        if t: m(f'v_xor_b32 v{t2}, {32*t}, v{t0}')
        m(f'v_add_u32 v{vTR[t]}, v{t2 if t else t0}, v{t1}')
    m(f'v_and_b32 v{t0}, 1, v{vK}')
    m(f'v_lshlrev_b32 v{t0}, 2, v{t0}')
    m(f'v_bfe_u32 v{t1}, v{vK}, 1, 2')
    m(f'v_and_b32 v{t2}, 0x38, v{vK}')
    m(f'v_or3_b32 v{t1}, v{t0}, v{t1}, v{t2}')
    m(f'v_lshlrev_b32 v{vAP}, 2, v{t1}')
    m(f'v_and_b32 v{t1}, 0x32, v{vK}')
    m(f'v_bfe_u32 v{t2}, v{vK}, 3, 1')
    m(f'v_or3_b32 v{t0}, v{t0}, v{t1}, v{t2}')
    m(f'v_and_b32 v{t1}, 4, v{vK}')
    m(f'v_lshl_or_b32 v{t0}, v{t1}, 1, v{t0}')
    m(f'v_lshlrev_b32 v{vAH}, 2, v{t0}')
    m(f'v_and_b32 v{t0}, 2, v{vN}')
    m(f'v_lshlrev_b32 v{t0}, 3, v{t0}')
    m(f'v_and_b32 v{t1}, 12, v{vN}')
    m(f'v_and_b32 v{t2}, 1, v{vN}')
    m(f'v_lshl_or_b32 v{t0}, v{t2}, 1, v{t0}')
    m('s_lshl_b32 s8, s3, 6')
    m(f'v_or3_b32 v{vAU}, v{t0}, v{t1}, s8')
    m('s_mov_b32 s12, 0xaaaa')
    m(f'v_mov_b32 v{SIDX}, 0x4444')
    m(f'v_mad_u32_u24 v{SIDX}, v{t2}, s12, v{SIDX}')
    m(f'v_lshlrev_b32 v{t2}, 4, v{t2}')
    m(f'v_lshl_or_b32 v{t2}, v{vG}, 5, v{t2}')
    m(f'v_and_b32 v{t0}, 2, v{vN}')
    m(f'v_lshl_or_b32 v{t2}, v{t0}, 7, v{t2}')
    m(f'v_mov_b32 v{t1}, 1024')
    for c in range(4):
        m(f's_mov_b32 s12, {0x000f000f << (4*c):#x}'); m('s_mov_b32 s13, s12')
        m(f'v_cndmask_b32 v{vCL[c]}, v{t1}, v{t2}, s[12:13]')
    m(f'v_lshlrev_b32 v{vAB}, 3, v{vK}')
    m(f'v_min_u32 v{t0}, 1, v{vG}')
    m(f'v_lshlrev_b32 v{t0}, 9, v{t0}')
    m(f'v_lshl_add_u32 v{vAZ}, v{vK}, 4, v{t0}')
    for r in range(4): m(f'v_mov_b32 v{ZER+r}, 0')
    m(f'ds_write_b128 v{vAZ}, {vr(ZER,4)} offset:{VZ0}')
    m(f'v_lshl_add_u32 v{vXA[0]}, v{vN}, 8, v{vCS[0]}')
    m(f'v_add_u32 v{vXA[0]}, s5, v{vXA[0]}')
    for k in range(1, 4): m(f'v_xor_b32 v{vXA[k]}, {64*k}, v{vXA[0]}')
    m(f'v_and_b32 v{t0}, 7, v{vN}')
    m(f'v_lshlrev_b32 v{t0}, 2, v{t0}')
    m('s_mov_b32 s12, 0x00ff00ff'); m('s_mov_b32 s13, s12')
    m('s_add_u32 s8, s5, 4096')
    for F, A in ((YF, YA), (ZF, ZA)):
        lo, hi = nib(F)
        m(f'v_mov_b32 v{t1}, {hi:#x}')
        m(f'v_mov_b32 v{t2}, {lo:#x}')
        m(f'v_cndmask_b32 v{t1}, v{t1}, v{t2}, s[12:13]')
        m(f'v_bfe_u32 v{t1}, v{t1}, v{t0}, 4')
        m(f'v_xor_b32 v{t2}, v{t1}, v{vG}')
        m(f'v_lshlrev_b32 v{t2}, 4, v{t2}')
        m(f'v_lshl_add_u32 v{t2}, v{t1}, 8, v{t2}')
        m(f'v_add_u32 v{A}, s8, v{t2}')
        for k in range(1, 4): m(f'v_xor_b32 v{A+k}, {64*k}, v{A}')
    m(f'v_mov_b32 v{t1}, 0xff800000')
    for G in range(NG):
        gm = group_mask(G)
        if gm == (1 << 64) - 1 or G == NG - 1:
            m(f'v_mov_b32 v{DD+4*G}, 0')
        else:
            m(f's_mov_b32 s12, {gm & 0xffffffff:#x}'); m(f's_mov_b32 s13, {gm >> 32:#x}')
            m(f'v_cndmask_b32 v{DD+4*G}, v{t1}, 0, s[12:13]')
        for r in range(1, 4): m(f'v_mov_b32 v{DD+4*G+r}, 0')
    m(f'v_mov_b32 v{VC}, 0x3f38aa3b')
    m('s_lshl_b32 s8, s4, 1')
    m(f'v_mov_b32 v{VOFF}, 0x7ffffff0')
    m(f'v_writelane_b32 v{VOFF}, s8, 0')
    def math(k):
        for _ in range(min(k, len(M))): e(M.pop(0))

    stamp(True); stamp(kind='a')
    e('s_load_dwordx16 s[16:31], s[0:1], 0')
    e('s_load_dwordx2 s[36:37], s[0:1], 64')
    if TIMING: e('s_load_dwordx2 s[56:57], s[0:1], 80')
    e('s_cmp_ge_u32 s2, 256')
    e('s_cbranch_scc1 L_end')
    e('s_getpc_b64 s[10:11]')
    e('L_pc:')
    e(f'v_lshlrev_b32 v{t0}, 7, v0')
    e(f'v_min_u32 v{t0}, L_end-L_pc, v{t0}')
    e(f'global_load_dword v{vPF}, v{t0}, s[10:11]')
    e(f'v_lshrrev_b32 v{t1}, 6, v0')
    e(f'v_and_b32 v{vN}, 15, v0')
    e(f'v_readfirstlane_b32 s3, v{t1}')
    e(f'v_bfe_u32 v{vG}, v0, 4, 2')
    e(f'v_and_b32 v{vK}, 63, v0')
    e('s_lshl_b32 s4, s2, 2')
    e('s_add_u32 s4, s4, s3')
    e('s_mul_i32 s6, s4, 104')
    e(f'v_mul_u32_u24 v{vIO}, 28, v{vG}')
    e(f'v_min_u32 v{vIO}, 76, v{vIO}')
    e(f'v_add_u32 v{vIO}, s6, v{vIO}')
    e('s_lshl_b32 s7, s3, 13')
    e(f's_mul_i32 s9, s3, {WWAVE}')
    e(f'v_lshlrev_b32 v{t0}, 1, v{vG}')
    e(f'v_xor_b32 v{t0}, v{t0}, v{vN}')
    e(f'v_lshlrev_b32 v{t0}, 4, v{t0}')
    e(f'v_lshl_add_u32 v{vWD}, v{vG}, 8, v{t0}')
    e('s_lshr_b32 s8, s2, 3')
    for j in range(4):
        if 'norot' in OPTS: e(f's_mov_b32 s12, {j}')
        else: e(f's_add_u32 s12, s8, {j}'); e('s_and_b32 s12, s12, 3')
        e(f's_lshl_b32 s13, s12, 11'); e(f's_add_u32 s{44+j}, s13, s7')
        e(f's_mul_i32 s13, s12, 2176'); e(f's_add_u32 s{48+j}, s13, s9')
    e('s_mov_b32 m0, s48')
    e(f'v_lshlrev_b32 v{vK4}, 2, v{vK}')
    e(f's_mul_i32 s5, s3, {ROWB}')
    e(f's_add_u32 s5, s5, {ROWS}')
    e('s_mov_b32 s42, 25600000'); e('s_mov_b32 s43, 0x00020000')
    e('s_mov_b32 s54, 32768'); e('s_mov_b32 s55, 0x00020000')
    e(f'v_xor_b32 v{t0}, v{vN}, v{vG}')
    e(f'v_lshlrev_b32 v{vCS[0]}, 4, v{t0}')
    for k in range(1, 4): e(f'v_xor_b32 v{vCS[k]}, {64*k}, v{vCS[0]}')
    stamp(kind='q')
    e('s_waitcnt lgkmcnt(0)')
    stamp(kind='pq')
    e(f'global_load_dwordx4 {vr(vIDX[0],4)}, v{vIO}, s[16:17] nt')
    e('s_mov_b32 s52, s24'); e('s_mov_b32 s53, s25')
    e(f'global_load_dwordx3 {vr(vIDX[4],3)}, v{vIO}, s[16:17] offset:16 nt')
    MI = optval('mi', 10)
    for i in range(8):
        if i and i % 2 == 0: e(f's_mov_b32 m0, s{48 + i//2}')
        if i >= 2: math(MI)
        e(f'buffer_load_dwordx4 v{vWD}, s[52:55], s{44 + i//2} offen offset:{1024*(i&1)} lds')
        if i % 2 == 1: stamp(kind='q')
    e('s_mov_b32 s40, s18'); e('s_mov_b32 s41, s19')
    math(MI)
    e(f'global_load_dword v{vSH}, v{vK4}, s[28:29]')
    math(MI)
    e(f'global_load_dword v{vSP}, v{vK4}, s[30:31]')
    math(MI)
    e(f'global_load_dword v{vSB2}, v{vK4}, s[26:27]')
    math(optval('m2', 20))
    e(f's_mov_b32 m0, s5')
    stamp(kind='pq')
    e('s_waitcnt vmcnt(11)')
    stamp(kind='pq')
    def rowdma(q):
        if q: e(f's_add_u32 m0, s5, {1024*q}')
        e(f'v_lshl_add_u32 v{vIDX[q]}, v{vIDX[q]}, 8, v{vCS[q%4]}')
        if q == 5: e('s_mov_b32 exec_hi, 0xffff0000')
        e(f'buffer_load_dwordx4 v{vIDX[q]}, s[40:43], 0 offen nt lds')
        if q == 6: e('s_mov_b32 exec_hi, -1')
    for q in range(4): rowdma(q)
    stamp(kind='pq')
    math(1000)
    if 'nohop' not in OPTS:
        for k in range(4):
            e(f's_cmp_eq_u32 s3, {k}')
            e(f's_cbranch_scc1 L_stub{k}')
    e('s_branch L_main')
    e('.p2align 12')
    e('L_main:')
    stamp(kind='pq')
    rd = []
    for s in range(4):
        for t in range(8):
            for hh in range(2):
                rd.append(f'ds_read_b64_tr_b16 {ar(16*t+4*s+2*hh,2)}, v{vTR[t&3]} offset:{WWAVE*s+1024*hh+128*(t>>2)}')
    def sfr(c, k): return f'ds_read_b128 {SF(c,k)}, v{vCL[c]} offset:{VEC + 128*(k&1) + 512*(k>>1)}'
    e('s_waitcnt vmcnt(7)')
    stamp(kind='pqr')
    for Tt in range(2):
        for s in range(4):
            e(f'ds_read_b128 {vr(WRAW+16*Tt+4*s,4)}, v{vWW[s]} offset:{(4096+256)*Tt}')
    if 'b1early' in OPTS: e('s_barrier')
    e('s_waitcnt vmcnt(4)')
    stamp(kind='r')
    e(f'ds_write_b32 v{vK4}, v{vSH} offset:{VHN}')
    for s in range(4):
        e(f'ds_read_b128 {vr(HB+4*s,4)}, v{vHB} offset:{VHN+64*s}')
    e(f'v_lshlrev_b32 v{vSB}, 16, v{vSB2}')
    e(f'v_and_b32 v{vSB2}, 0xffff0000, v{vSB2}')
    e(f'ds_write_b64 v{vAB}, {vr(vSB,2)} offset:{VB}')
    e(f'ds_write_b32 v{vAH}, v{vSH} offset:{VH}')
    e(f'ds_write_b32 v{vAP}, v{vSP} offset:{VP}')
    for t in range(8):
        e(f'ds_read_b128 {vr(BIAS+4*t,4)}, v{vHB} offset:{VB+64*t}')
    stamp(kind='r')
    if 'b1early' not in OPTS: e('s_barrier')
    stamp(kind='pr')
    e('s_waitcnt lgkmcnt(11)')
    for Tt in range(2):
        for s in range(4):
            c = '0' if s == 0 else vr(UA+4*Tt, 4)
            e(f'v_mfma_f32_16x16x32_bf16 {vr(UA+4*Tt,4)}, {vr(HB+4*s,4)}, {vr(WRAW+16*Tt+4*s,4)}, {c}')
            e(rd[2*(4*Tt + s)]); e(rd[1 + 2*(4*Tt + s)])
    stamp(kind='r')
    for i in range(16, 23): e(rd[i])
    e(f'v_cvt_pk_bf16_f32 v{t2}, v{UA}, v{UA+4}')
    e(f'ds_write_b16 v{vAU}, v{t2} offset:{VU}')
    e(f'ds_write_b16_d16_hi v{vAU}, v{t2} offset:{VU+32}')
    for x in rd[23:40]: e(x)
    e('s_waitcnt lgkmcnt(15)')
    e('s_barrier')
    e(sfr(0, 2)); e(sfr(0, 3))
    for x in rd[40:]: e(x)
    stamp(kind='r')
    for q in range(4, 7): rowdma(q)
    e('s_cmp_eq_u32 s3, 4')
    global DEFER
    DEFER = [sfr(0, 0), sfr(0, 1)] + [sfr(c, k) for c in range(1, 4) for k in (2, 3, 0, 1)]
    stamp(kind='pr')
    return vXA

def main_phase(vXA):
    seq = []; edges = []; mem = []
    def a(s, info=None):
        x = Ins(s); x.info = info; seq.append(x); return x
    def load_set(S, addrs, vmw, earliest, lat):
        base = RS[S]
        w = a(f's_waitcnt vmcnt({vmw})', ('early', earliest)); mem.append(w)
        rd = [a(f'ds_read_b128 {vr(base+16+4*s,4)}, v{addrs[s]}') for s in range(4)]
        mem.extend(rd)
        nd = 0
        if lat:
            wl = a('s_waitcnt lgkmcnt(0)'); mem.append(wl); edges.append((rd[3], wl, lat))
        for s in range(4):
            if not lat:
                wl = a(f's_waitcnt lgkmcnt({3-s+nd})'); mem.append(wl)
            for i in range(4 * s, 4 * s + 4):
                x = a(f'v_lshlrev_b32 v{base+2*i}, 16, v{base+16+i}'); edges.append((wl, x, 0))
                x = a(f'v_and_b32 v{base+2*i+1}, 0xffff0000, v{base+16+i}'); edges.append((wl, x, 0))
    prn = [0]
    def gen(t):
        P, Dp, p = TILES[t]
        for s in range(4):
            for i in range(4):
                q = PR + 2 * (prn[0] % 4); prn[0] += 1
                for h in range(2):
                    r = 8 * s + 2 * i + h
                    if p == 'id': a(f'v_mul_f32 v{q+h}, v{RS[Dp]+r}, v{RS[P]+r}')
                    else: a(f'v_mul_f32_dpp v{q+h}, v{RS[Dp]+r}, v{RS[P]+r} {p}{FULL}')
                a(f'v_cvt_pk_bf16_f32 v{BF[t&1]+4*s+i}, v{q}, v{q+1}')
    load_set('X', vXA, 3, 0, 0)
    wdef = {}
    sp = optval('sp', 5)
    for i in range(0, len(DEFER), 2):
        d0 = a(DEFER[i], ('early', 20 + sp * i)); d1 = a(DEFER[i + 1], ('early', 20 + sp * (i + 1)))
        w = a('s_waitcnt lgkmcnt(0)'); edges.append((d1, w, 10))
        mem.extend([d0, d1, w])
        wdef[i // 2] = w
    for t in range(NT):
        if t == TY: load_set('Y', [YA + k for k in range(4)], 0, optval('ye', 120), 24)
        if t == TZ: load_set('Z', [ZA + k for k in range(4)], 0, optval('ze', 300), 24)
        gen(t)
        G, c = t // 4, t % 4
        d = vr(DD + 4 * G, 4)
        for k in range(2):
            x = a(f'v_smfmac_f32_16x16x64_bf16 {d}, {SF(c,2+k)}, {vr(BF[t&1]+8*k,8)}, v{SIDX}', ('S', t, 36 * t + 18 + 9 * k))
            if 1 <= t <= 3: edges.append((wdef[2 * t - 1], x, 0))
        for m in range(8):
            acc = vr(ACC + 4 * m, 4)
            for s in range(4):
                cc = vr(BIAS + 4 * m, 4) if s == 0 else acc
                a(f'v_mfma_f32_16x16x32_bf16 {acc}, {WF(m,s)}, {vr(BF[t&1]+4*s,4)}, {cc}', ('M', t, m, s, 36 * t + 9 * s + m))
            for h in range(2):
                a(f'v_cvt_pk_bf16_f32 v{PK+2*m+h}, |v{ACC+4*m+2*h}|, |v{ACC+4*m+2*h+1}|')
            if m % 4 == 3:
                k = m // 4
                x = a(f'v_smfmac_f32_16x16x64_bf16 {d}, {SF(c,k)}, {vr(PK+8*k,8)}, v{SIDX}', ('S', t, 36 * t + 40 + 4 * k))
                if t <= 3: edges.append((wdef[2 * t], x, 0))
        if c == 3 or t == NT - 1:
            a(f'v_add_f32 v{DD+4*G}, v{DD+4*G}, v{DD+4*G+1}')
            a(f'v_add_f32 v{DD+4*G+2}, v{DD+4*G+2}, v{DD+4*G+3}')
            if G == 2: a(f'v_max3_f32 v{VM}, v{DD}, v{DD+4}, v{DD+8}')
            if G == 4:
                E = lambda G: DD + 4 * G
                Q = lambda G: DD + 4 * G + 2
                ML, F = YA, YA + 1
                a(f'v_max3_f32 v{VM}, v{VM}, v{DD+12}, v{DD+16}')
                a(f'v_mul_f32 v{ML}, v{VM}, v{VC}')
                for r in (8, 4, 2, 1):
                    a(f'v_max_f32_dpp v{VM}, v{VM}, v{VM} row_ror:{r}{FULL}')
                a(f'v_max_f32_dpp v{VM}, v{VM}, v{VM} row_bcast:15 row_mask:0xa bank_mask:0xf')
                a(f'v_max_f32_dpp v{VM}, v{VM}, v{VM} row_bcast:31 row_mask:0xc bank_mask:0xf')
                a(f'v_readlane_b32 s14, v{VM}, 63')
                a(f'v_mul_f32 v{VT0}, s14, v{VC}')
                a(f'v_sub_f32 v{F}, v{ML}, v{VT0}')
                a(f'v_exp_f32 v{F}, v{F}')
                for g2 in range(5):
                    a(f'v_fma_f32 v{E(g2)}, v{E(g2)}, v{VC}, -v{ML}')
                    a(f'v_exp_f32 v{E(g2)}, v{E(g2)}')
                a(f'v_add_f32 v{VT1}, v{E(0)}, v{E(1)}')
                a(f'v_mul_f32 v{VT2}, v{E(0)}, v{Q(0)}')
                a(f'v_fmac_f32 v{VT2}, v{E(1)}, v{Q(1)}')
                for g2 in range(2, 5):
                    a(f'v_add_f32 v{VT1}, v{VT1}, v{E(g2)}')
                    a(f'v_fmac_f32 v{VT2}, v{E(g2)}, v{Q(g2)}')
                a(f'v_mul_f32 v{VT1}, v{VT1}, v{F}')
                a(f'v_mul_f32 v{VT2}, v{VT2}, v{F}')
                for r in (8, 4, 2, 1):
                    a(f'v_add_f32_dpp v{VT1}, v{VT1}, v{VT1} row_ror:{r}{FULL}')
                    a(f'v_add_f32_dpp v{VT2}, v{VT2}, v{VT2} row_ror:{r}{FULL}')
                for b, mk in ((15, '0xa'), (31, '0xc')):
                    a(f'v_add_f32_dpp v{VT1}, v{VT1}, v{VT1} row_bcast:{b} row_mask:{mk} bank_mask:0xf')
                    a(f'v_add_f32_dpp v{VT2}, v{VT2}, v{VT2} row_bcast:{b} row_mask:{mk} bank_mask:0xf')
                a(f'v_readlane_b32 s15, v{VT1}, 63')
                a(f'v_readlane_b32 s34, v{VT2}, 63')
    u0, u1, M5 = YA + 2, YA + 3, ZA
    a(f'v_max_f32 v{M5}, s14, v{E(5)}')
    for r in (4, 2, 1):
        a(f'v_max_f32_dpp v{M5}, v{M5}, v{M5} row_ror:{r}{FULL}')
    a(f'v_mul_f32 v{u0}, v{M5}, v{VC}')
    a(f'v_fma_f32 v{E(5)}, v{E(5)}, v{VC}, -v{u0}')
    a(f'v_sub_f32 v{u1}, v{VT0}, v{u0}')
    a(f'v_exp_f32 v{E(5)}, v{E(5)}')
    a(f'v_exp_f32 v{u1}, v{u1}')
    a(f'v_mul_f32 v{Q(5)}, v{E(5)}, v{Q(5)}')
    for r in (4, 2, 1):
        a(f'v_add_f32_dpp v{E(5)}, v{E(5)}, v{E(5)} row_ror:{r}{FULL}')
        a(f'v_add_f32_dpp v{Q(5)}, v{Q(5)}, v{Q(5)} row_ror:{r}{FULL}')
    a(f'v_fmac_f32 v{E(5)}, s15, v{u1}')
    a(f'v_fmac_f32 v{Q(5)}, s34, v{u1}')
    a(f'v_rcp_f32 v{E(5)}, v{E(5)}')
    a(f'v_mul_f32 v{Q(5)}, v{Q(5)}, v{E(5)}')
    a(f'v_cvt_pk_bf16_f32 v{Q(5)}, v{Q(5)}, v{Q(5)}')
    a(f'buffer_store_short v{Q(5)}, v{VOFF}, s[36:39], 0 offen')
    for x, y in zip(mem, mem[1:]): edges.append((x, y, 0))
    nodes, byins = build_dag(seq, edges)
    BIG = 10 ** 6
    for n in reversed(nodes):
        inf = n.ins.info
        if n.ins.kind == 'mfma': n.prio = inf[-1]
        else:
            lat = lambda q: (1 + max(d for p, d in q.preds if p is n)) * optval('lw', 40) / 100.0
            n.prio = min([q.prio - lat(q) for q in n.succs], default=36 * NT + optval('end', 20))
        if inf and inf[0] == 'early': n.earliest = inf[1]
    pend_m = [n for n in nodes if n.ins.kind == 'mfma']
    pend_v = sorted([n for n in nodes if n.ins.kind != 'mfma'], key=lambda n: (n.prio, n.idx))
    pos = 0; t = 0; pipe = 0; nm = 0; last = None; out = []; nops = 0; tile_t = {}
    def ready(n):
        return n.earliest <= nm and all(p.pos is not None and pos - p.pos - 1 >= d for p, d in n.preds)
    def pick_m():
        win = pend_m[:80]
        rd = [n for n in win if ready(n)]
        if not rd: return None
        if last is not None and last[0] == 'M' and last[3] < 3:
            for n in rd:
                i = n.ins.info
                if i[0] == 'M' and i[1:3] == last[1:3]: return n
        sm = [n for n in rd if n.ins.info[0] == 'S']
        mm = [n for n in rd if n.ins.info[0] == 'M']
        if sm and not (last is not None and last[0] == 'S' and mm): return sm[0]
        return min(mm, key=lambda n: n.ins.info[1:4])
    def pick_v():
        for n in pend_v[:400]:
            if ready(n): return n
        return None
    FREE = 'nofree' not in OPTS
    while pend_m or pend_v:
        if FREE and out and out[-1].kind == 'mfma' and out[-1].op.startswith('v_mfma'):
            f = next((n for n in pend_v if n.ins.kind in ('ds', 'wait') and ready(n)), None)
            if f is not None:
                f.pos = pos; pend_v.remove(f); out.append(f.ins); pos += 1
                continue
        m = pick_m(); v = None
        if m is None or t < pipe: v = pick_v()
        if v is not None:
            v.pos = pos; pend_v.remove(v); out.append(v.ins); pos += 1; t += 8 if v.ins.op in ('v_exp_f32', 'v_rcp_f32') else 4
        elif m is not None:
            t = max(t, pipe)
            m.pos = pos; pend_m.remove(m); out.append(m.ins); pos += 1
            pipe = t + 16; t += optval('sc', 12) if m.ins.info[0] == 'S' else 8; nm += 1; last = m.ins.info
            tile_t.setdefault(last[1], t)
        else:
            out.append(Ins('s_nop 0')); pos += 1; t += 4; nops += 1
    if VERB:
        print('model cycles', t, 'nops', nops, 'tile starts', [tile_t[k] for k in sorted(tile_t)])
    for x in out:
        if x.kind == 'nop' and prog[-1].kind == 'nop' and int(prog[-1].ops[0]) < 15:
            prog[-1] = Ins(f's_nop {int(prog[-1].ops[0]) + 1}')
        else:
            prog.append(x)
            if TIMING and x.text.startswith('s_waitcnt vmcnt(3)'): stamp(kind='a')
            inf = getattr(x, 'info', None)
            if inf and inf[0] == 'M' and inf[2:4] == (0, 0) and (inf[1] % 2 == 1 or inf[1] < 4): stamp(kind='t')

def tail():
    if TIMING:
        stamp(kind='a'); stamp(True)
        e('s_waitcnt lgkmcnt(0)')
        e('s_mov_b32 s58, 0x1000000'); e('s_mov_b32 s59, 0x00020000')
        e('s_mul_i32 s9, s4, 128')
        e(f'v_mov_b32 v{VT0}, 0x7ffffff0')
        e(f'v_writelane_b32 v{VT0}, s9, 0')
        for i in range(stampn[0]):
            e(f'v_mov_b32 v{VT1}, s{60+2*i}')
            e(f'buffer_store_dword v{VT1}, v{VT0}, s[56:59], 0 offen offset:{4*i}')
    e('L_end:')

vXA = prologue()
n_pro = len(prog)
main_phase(vXA)
tail()
prog, nins = fix_hazards(prog, VERB)
errs = check_waitcnt(prog)
assert not errs, '\n'.join(errs[:20])
if VERB: print('instructions', len(prog), 'inserted states', nins, 'stamps', stampn[0])

def render(prog):
    body = '\n'.join(x.text if x.kind == 'label' else '    ' + x.text for x in prog)
    return HDR + HEAD + body + FOOT

HEAD = f"""; @launch grid=(256,1,1) block=(256,1,1) lds={LDS_TOTAL}
.amdgcn_target "amdgcn-amd-amdhsa--gfx950"
.text
.globl standalone__factorization_afm__recsys_kernel
.p2align 8
.type standalone__factorization_afm__recsys_kernel,@function
standalone__factorization_afm__recsys_kernel:
"""
FOOT = """
s_endpgm
.section .rodata,"a"
.p2align 6
.amdhsa_kernel standalone__factorization_afm__recsys_kernel
  .amdhsa_next_free_vgpr 448
  .amdhsa_next_free_sgpr 102
  .amdhsa_accum_offset 256
  .amdhsa_group_segment_fixed_size 0
  .amdhsa_kernarg_size 88
  .amdhsa_user_sgpr_count 2
  .amdhsa_user_sgpr_kernarg_segment_ptr 1
  .amdhsa_system_sgpr_workgroup_id_x 1
  .amdhsa_float_denorm_mode_32 3
.end_amdhsa_kernel
"""
def sizes(ins):
    import subprocess, tempfile, re
    d = tempfile.mkdtemp()
    open(d + '/a.s', 'w').write('.amdgcn_target "amdgcn-amd-amdhsa--gfx950"\n.text\n' + '\n'.join(x.text for x in ins) + '\n')
    subprocess.run(['clang', '-x', 'assembler', '-target', 'amdgcn-amd-amdhsa', '-mcpu=gfx950', '-c', d + '/a.s', '-o', d + '/a.o'], check=True)
    o = subprocess.run(['llvm-objdump', '-d', '--mcpu=gfx950', d + '/a.o'], capture_output=True, text=True).stdout
    r = [4 * len(m.group(1).split()) for m in re.finditer(r'// [0-9A-F]{12}: ([0-9A-F ]+)', o)]
    assert len(r) == len(ins)
    return r
if 'nohop' not in OPTS:
    i0 = next(i for i, x in enumerate(prog) if x.text == 'L_main:') + 1
    body = [x for x in prog[i0:] if x.kind != 'label']
    sz = dict(zip(map(id, body), sizes(body)))
    newp = prog[:i0]; off = 0; k = 0; prev = None
    for x in prog[i0:]:
        if k < 4 and off >= 4096 * (k + 1) + optval('so', 0) and prev is not None and prev.op.startswith('v_mfma') and x.kind == 'valu':
            newp += [Ins(f'L_stub{k}:'), Ins('s_cbranch_scc1 L_main')]; off += 4; k += 1
        newp.append(x); off += sz.get(id(x), 0); prev = x
    assert k == 4, k
    prog = newp
    if VERB: print('main bytes', off)
open(OUT, 'w').write(render(prog))
```

```python
import sys, os
sys.path.insert(0, os.path.dirname(os.path.abspath(__file__)))
from asmlib import Ins, fix_hazards, check_waitcnt, build_dag

OUT = sys.argv[1] if len(sys.argv) > 1 else 'standalone__factorization_afm__recsys.s'
OPTS = set(sys.argv[2].split(',')) if len(sys.argv) > 2 else set()
TIMING = 'time' in OPTS
VERB = 'v' in OPTS
def optval(name, default):
    for o in OPTS:
        if o.startswith(name + '='):
            return int(o.split('=')[1])
    return default

HDR = open('standalone__factorization_afm__recsys.s.ref').read().split('; Override launch')[0]

XF = list(range(16))
YF = [22, 23, 17, 23, 25, 18, 24, 19, 21, 20, 23, 25, 24, 22, 16, 21]
ZF = [23, 20, 20, 16, 22, 19, 21, 16, 17, 18, 22, 18, 25, 24, 17, 19]
def pat(p):
    if p == 'id': return list(range(16))
    k, v = p.split(':'); v = int(v)
    return [(n - v) % 16 for n in range(16)] if k == 'row_ror' else [v] * 16
TILES = [('X', 'X', f'row_ror:{r}') for r in range(1, 8)]
TILES += [('X', 'Y', f'row_newbcast:{YF.index(f)}') for f in range(16, 26)]
TILES += [('Y', 'Z', 'row_ror:13'), ('Y', 'Z', 'row_ror:5'), ('Y', 'Z', 'id')]
TILES += [('X', 'X', 'row_ror:8')]
TY, TZ = 7, 17
NT = len(TILES)
FS = {'X': XF, 'Y': YF, 'Z': ZF}
seen = set(); VALID = []
for a, b, p in TILES:
    v = []
    for n in range(16):
        i, j = FS[a][n], FS[b][pat(p)[n]]
        assert i != j
        key = (min(i, j), max(i, j))
        v.append(key not in seen); seen.add(key)
    VALID.append(v)
assert len(seen) == 325 and sum(map(sum, VALID)) == 325
NG = (NT + 3) // 4
def group_mask(G):
    m = 0
    for c in range(4):
        t = 4 * G + c
        for n in range(16):
            if t < NT and VALID[t][n]: m |= 1 << (16 * c + n)
    return m

WWAVE = 8704
VEC = 4 * WWAVE
ROWS = VEC + 2560; ROWB = 7168
VH, VZ0, VU, VP, VZ1, VB, VHN = VEC, VEC + 256, VEC + 512, VEC + 768, VEC + 1024, VEC + 1792, VEC + 2304
LDS_TOTAL = ROWS + 4 * ROWB

SIDX = 1
YA, ZA = 2, 6
VC, VOFF, VM, VT0, VT1, VT2 = 10, 11, 12, 13, 14, 15
RS = {'X': 16, 'Y': 48, 'Z': 80}
BIAS, BF, ACC, PK, PR, DD = 112, [144, 160], 176, 208, 224, 232
def vr(a, n=1): return f'v{a}' if n == 1 else f'v[{a}:{a+n-1}]'
def ar(a, n=1): return f'a{a}' if n == 1 else f'a[{a}:{a+n-1}]'
def WF(t, s): return ar(16 * t + 4 * s, 4)
def SF(c, k): return ar(128 + 16 * c + 4 * k, 4)
FULL = ' row_mask:0xf bank_mask:0xf'

prog = []
def e(s, tag=None):
    x = Ins(s, tag); prog.append(x); return x
stampn = [0]
def stamp(real=False, kind='p'):
    mode = 't' if 'tt' in OPTS else 'q' if 'tq' in OPTS else 'r' if 'tr' in OPTS else 'p'
    if TIMING and (real or kind == 'a' or mode in kind):
        e(f's_mem{"real" if real else ""}time s[{60+2*stampn[0]}:{61+2*stampn[0]}]'); stampn[0] += 1

POS = [16, 17, 18, 19, 20, 21, 23, 24, 25, 27]
def nib(F):
    P = [POS[f - 16] - 16 for f in F]
    lo = sum(P[n] << (4 * n) for n in range(8)); hi = sum(P[n + 8] << (4 * n) for n in range(8))
    return lo, hi

def prologue():
    T = iter(range(48, 80))
    vN, vG, vK, vIO, vK4, vHB, vWD = [next(T) for _ in range(7)]
    vCS = [next(T) for _ in range(4)]
    vWW = [next(T) for _ in range(4)]
    vAH, vAP, vAU, vAB, vAZ, t0, t1, t2, vPF, vTL = [next(T) for _ in range(10)]
    vCL = [VM, VT0, VT1, VT2]
    vIDX = list(range(PK, PK + 7))
    vXA = list(range(PK + 8, PK + 12))
    vSH, vSP, vSB, vSB2 = PK + 12, PK + 13, PK + 14, PK + 15
    WRAW = RS['Z']; HB = BF[0]; UA = ACC; ZER = BF[1]
    vTR = list(range(PR, PR + 8))

    M = []
    m = M.append
    m('s_mov_b32 s38, 2048'); m('s_mov_b32 s39, 0x00020000')
    m(f'v_lshlrev_b32 v{vHB}, 4, v{vG}')
    m(f'v_and_b32 v{t0}, 3, v{vN}')
    m(f'v_lshlrev_b32 v{t0}, 1, v{t0}')
    m(f'v_xor_b32 v{t0}, v{t0}, v{vG}')
    m(f'v_lshlrev_b32 v{t0}, 4, v{t0}')
    m(f'v_lshrrev_b32 v{t1}, 3, v{vN}')
    m(f'v_lshlrev_b32 v{t1}, 7, v{t1}')
    m(f'v_lshl_add_u32 v{t1}, v{vN}, 8, v{t1}')
    m(f'v_add_u32 v{t1}, s9, v{t1}')
    m(f'v_add_u32 v{vWW[0]}, v{t0}, v{t1}')
    for k in range(1, 4):
        m(f'v_xor_b32 v{t2}, {64*k}, v{t0}')
        m(f'v_add_u32 v{vWW[k]}, v{t2}, v{t1}')
    m(f'v_lshrrev_b32 v{t0}, 2, v{vN}')
    m(f'v_mul_u32_u24 v{t1}, {2048+128}, v{vG}')
    m(f'v_lshl_add_u32 v{t1}, v{t0}, 8, v{t1}')
    m(f'v_and_b32 v{t2}, 3, v{vN}')
    m(f'v_lshl_add_u32 v{t1}, v{t2}, 3, v{t1}')
    m(f'v_lshlrev_b32 v{t0}, 5, v{t0}')
    for t in range(4):
        if t: m(f'v_xor_b32 v{t2}, {32*t}, v{t0}')
        m(f'v_add_u32 v{vTR[t]}, v{t2 if t else t0}, v{t1}')
    m(f'v_and_b32 v{t0}, 1, v{vK}')
    m(f'v_lshlrev_b32 v{t0}, 2, v{t0}')
    m(f'v_bfe_u32 v{t1}, v{vK}, 1, 2')
    m(f'v_and_b32 v{t2}, 0x38, v{vK}')
    m(f'v_or3_b32 v{t1}, v{t0}, v{t1}, v{t2}')
    m(f'v_lshlrev_b32 v{vAP}, 2, v{t1}')
    m(f'v_and_b32 v{t1}, 0x32, v{vK}')
    m(f'v_bfe_u32 v{t2}, v{vK}, 3, 1')
    m(f'v_or3_b32 v{t0}, v{t0}, v{t1}, v{t2}')
    m(f'v_and_b32 v{t1}, 4, v{vK}')
    m(f'v_lshl_or_b32 v{t0}, v{t1}, 1, v{t0}')
    m(f'v_lshlrev_b32 v{vAH}, 2, v{t0}')
    m(f'v_and_b32 v{t0}, 2, v{vN}')
    m(f'v_lshlrev_b32 v{t0}, 3, v{t0}')
    m(f'v_and_b32 v{t1}, 12, v{vN}')
    m(f'v_and_b32 v{t2}, 1, v{vN}')
    m(f'v_lshl_or_b32 v{t0}, v{t2}, 1, v{t0}')
    m('s_lshl_b32 s8, s3, 6')
    m(f'v_or3_b32 v{vAU}, v{t0}, v{t1}, s8')
    m('s_mov_b32 s12, 0xaaaa')
    m(f'v_mov_b32 v{SIDX}, 0x4444')
    m(f'v_mad_u32_u24 v{SIDX}, v{t2}, s12, v{SIDX}')
    m(f'v_lshlrev_b32 v{t2}, 4, v{t2}')
    m(f'v_lshl_or_b32 v{t2}, v{vG}, 5, v{t2}')
    m(f'v_and_b32 v{t0}, 2, v{vN}')
    m(f'v_lshl_or_b32 v{t2}, v{t0}, 7, v{t2}')
    m(f'v_mov_b32 v{t1}, 1024')
    for c in range(4):
        m(f's_mov_b32 s12, {0x000f000f << (4*c):#x}'); m('s_mov_b32 s13, s12')
        m(f'v_cndmask_b32 v{vCL[c]}, v{t1}, v{t2}, s[12:13]')
    m(f'v_lshlrev_b32 v{vAB}, 3, v{vK}')
    m(f'v_min_u32 v{t0}, 1, v{vG}')
    m(f'v_lshlrev_b32 v{t0}, 9, v{t0}')
    m(f'v_lshl_add_u32 v{vAZ}, v{vK}, 4, v{t0}')
    for r in range(4): m(f'v_mov_b32 v{ZER+r}, 0')
    m(f'ds_write_b128 v{vAZ}, {vr(ZER,4)} offset:{VZ0}')
    m(f'v_lshl_add_u32 v{vXA[0]}, v{vN}, 8, v{vCS[0]}')
    m(f'v_add_u32 v{vXA[0]}, s5, v{vXA[0]}')
    for k in range(1, 4): m(f'v_xor_b32 v{vXA[k]}, {64*k}, v{vXA[0]}')
    m(f'v_and_b32 v{t0}, 7, v{vN}')
    m(f'v_lshlrev_b32 v{t0}, 2, v{t0}')
    m('s_mov_b32 s12, 0x00ff00ff'); m('s_mov_b32 s13, s12')
    m('s_add_u32 s8, s5, 4096')
    for F, A in ((YF, YA), (ZF, ZA)):
        lo, hi = nib(F)
        m(f'v_mov_b32 v{t1}, {hi:#x}')
        m(f'v_mov_b32 v{t2}, {lo:#x}')
        m(f'v_cndmask_b32 v{t1}, v{t1}, v{t2}, s[12:13]')
        m(f'v_bfe_u32 v{t1}, v{t1}, v{t0}, 4')
        m(f'v_xor_b32 v{t2}, v{t1}, v{vG}')
        m(f'v_lshlrev_b32 v{t2}, 4, v{t2}')
        m(f'v_lshl_add_u32 v{t2}, v{t1}, 8, v{t2}')
        m(f'v_add_u32 v{A}, s8, v{t2}')
        for k in range(1, 4): m(f'v_xor_b32 v{A+k}, {64*k}, v{A}')
    m(f'v_mov_b32 v{t1}, 0xff800000')
    for G in range(NG):
        gm = group_mask(G)
        if gm == (1 << 64) - 1 or G == NG - 1:
            m(f'v_mov_b32 v{DD+4*G}, 0')
        else:
            m(f's_mov_b32 s12, {gm & 0xffffffff:#x}'); m(f's_mov_b32 s13, {gm >> 32:#x}')
            m(f'v_cndmask_b32 v{DD+4*G}, v{t1}, 0, s[12:13]')
        for r in range(1, 4): m(f'v_mov_b32 v{DD+4*G+r}, 0')
    m(f'v_mov_b32 v{VC}, 0x3f38aa3b')
    m('s_lshl_b32 s8, s4, 1')
    m(f'v_mov_b32 v{VOFF}, 0x7ffffff0')
    m(f'v_writelane_b32 v{VOFF}, s8, 0')
    def math(k):
        for _ in range(min(k, len(M))): e(M.pop(0))

    stamp(True); stamp(kind='a')
    e('s_load_dwordx16 s[16:31], s[0:1], 0')
    e('s_load_dwordx2 s[36:37], s[0:1], 64')
    if TIMING: e('s_load_dwordx2 s[56:57], s[0:1], 80')
    e('s_cmp_ge_u32 s2, 256')
    e('s_cbranch_scc1 L_end')
    e('s_getpc_b64 s[10:11]')
    e('L_pc:')
    e(f'v_lshlrev_b32 v{t0}, 7, v0')
    e(f'v_min_u32 v{t0}, L_end-L_pc, v{t0}')
    e(f'global_load_dword v{vPF}, v{t0}, s[10:11]')
    e(f'v_lshrrev_b32 v{t1}, 6, v0')
    e(f'v_and_b32 v{vN}, 15, v0')
    e(f'v_readfirstlane_b32 s3, v{t1}')
    e(f'v_bfe_u32 v{vG}, v0, 4, 2')
    e(f'v_and_b32 v{vK}, 63, v0')
    e('s_lshl_b32 s4, s2, 2')
    e('s_add_u32 s4, s4, s3')
    e('s_mul_i32 s6, s4, 104')
    e(f'v_mul_u32_u24 v{vIO}, 28, v{vG}')
    e(f'v_min_u32 v{vIO}, 76, v{vIO}')
    e(f'v_add_u32 v{vIO}, s6, v{vIO}')
    e('s_lshl_b32 s7, s3, 13')
    e(f's_mul_i32 s9, s3, {WWAVE}')
    e(f'v_lshlrev_b32 v{t0}, 1, v{vG}')
    e(f'v_xor_b32 v{t0}, v{t0}, v{vN}')
    e(f'v_lshlrev_b32 v{t0}, 4, v{t0}')
    e(f'v_lshl_add_u32 v{vWD}, v{vG}, 8, v{t0}')
    e('s_lshr_b32 s8, s2, 3')
    for j in range(4):
        if 'norot' in OPTS: e(f's_mov_b32 s12, {j}')
        else: e(f's_add_u32 s12, s8, {j}'); e('s_and_b32 s12, s12, 3')
        e(f's_lshl_b32 s13, s12, 11'); e(f's_add_u32 s{44+j}, s13, s7')
        e(f's_mul_i32 s13, s12, 2176'); e(f's_add_u32 s{48+j}, s13, s9')
    e('s_mov_b32 m0, s48')
    e(f'v_lshlrev_b32 v{vK4}, 2, v{vK}')
    e(f's_mul_i32 s5, s3, {ROWB}')
    e(f's_add_u32 s5, s5, {ROWS}')
    e('s_mov_b32 s42, 25600000'); e('s_mov_b32 s43, 0x00020000')
    e('s_mov_b32 s54, 32768'); e('s_mov_b32 s55, 0x00020000')
    e(f'v_xor_b32 v{t0}, v{vN}, v{vG}')
    e(f'v_lshlrev_b32 v{vCS[0]}, 4, v{t0}')
    for k in range(1, 4): e(f'v_xor_b32 v{vCS[k]}, {64*k}, v{vCS[0]}')
    ST = optval('st', 0)
    if ST in (2, 3):
        e('s_lshr_b32 s14, s2, 3'); e('s_lshl_b32 s14, s14, 2'); e('s_add_u32 s14, s14, s3'); e('s_and_b32 s14, s14, 15')
        e('s_mul_i32 s14, s14, 1600000')
    if ST == 4:
        e('s_mul_i32 s14, s3, 6400000')
    if ST in (6, 7):
        e('s_lshr_b32 s14, s2, 3')
        if ST == 6: e('s_lshl_b32 s14, s14, 2'); e('s_add_u32 s14, s14, s3')
        e('s_and_b32 s14, s14, 31')
        e('s_sub_u32 s15, s14, 16')
        e('s_cmp_lt_u32 s15, 5')
        e('s_cselect_b32 s12, 0, 1600000')
        e('s_cselect_b32 s13, s15, -3')
        e('s_lshl_b32 s13, s13, 3')
        e('s_add_u32 s13, s13, 32')
        e('s_load_dwordx2 s[34:35], s[0:1], s13')
        e('s_and_b32 s14, s14, 15')
        e('s_mul_i32 s14, s14, s12')
    if ST == 5:
        e(f'v_mul_u32_u24 v{vTL}, 1600000, v{vN}')
    stamp(kind='q')
    e('s_waitcnt lgkmcnt(0)')
    stamp(kind='pq')
    e(f'global_load_dwordx4 {vr(vIDX[0],4)}, v{vIO}, s[16:17] nt')
    if ST == 1:
        for k in range(16):
            e(f's_mov_b32 s14, {1600000*k}')
            e(f's_load_dword s15, s[18:19], s14')
    if ST in (2, 3): e(f's_load_dword s15, s[18:19], s14')
    if ST in (6, 7): e(f's_load_dword s15, s[34:35], s14')
    if ST == 4:
        for k in range(4):
            e(f's_load_dword s15, s[18:19], s14')
            e('s_add_u32 s14, s14, 1600000')
    if ST in (1, 2, 4):
        for p in (24, 28, 30, 26, 36): e(f's_load_dword s15, s[{p}:{p+1}], 0')
    if ST == 5:
        e(f'global_load_dword v{vTL}, v{vTL}, s[18:19] nt')
    e('s_mov_b32 s52, s24'); e('s_mov_b32 s53, s25')
    e(f'global_load_dwordx3 {vr(vIDX[4],3)}, v{vIO}, s[16:17] offset:16 nt')
    MI = optval('mi', 10)
    for i in range(8):
        if i and i % 2 == 0: e(f's_mov_b32 m0, s{48 + i//2}')
        if i >= 2: math(MI)
        e(f'buffer_load_dwordx4 v{vWD}, s[52:55], s{44 + i//2} offen offset:{1024*(i&1)} lds')
        if i % 2 == 1: stamp(kind='q')
    e('s_mov_b32 s40, s18'); e('s_mov_b32 s41, s19')
    math(MI)
    e(f'global_load_dword v{vSH}, v{vK4}, s[28:29]')
    math(MI)
    e(f'global_load_dword v{vSP}, v{vK4}, s[30:31]')
    math(MI)
    e(f'global_load_dword v{vSB2}, v{vK4}, s[26:27]')
    math(optval('m2', 20))
    e(f's_mov_b32 m0, s5')
    stamp(kind='pq')
    e('s_waitcnt vmcnt(11)')
    stamp(kind='pq')
    def rowdma(q):
        if q: e(f's_add_u32 m0, s5, {1024*q}')
        e(f'v_lshl_add_u32 v{vIDX[q]}, v{vIDX[q]}, 8, v{vCS[q%4]}')
        if q == 5: e('s_mov_b32 exec_hi, 0xffff0000')
        e(f'buffer_load_dwordx4 v{vIDX[q]}, s[40:43], 0 offen nt lds')
        if q == 6: e('s_mov_b32 exec_hi, -1')
    for q in range(4): rowdma(q)
    stamp(kind='pq')
    math(1000)
    if 'nohop' not in OPTS:
        for k in range(4):
            e(f's_cmp_eq_u32 s3, {k}')
            e(f's_cbranch_scc1 L_stub{k}')
    e('s_branch L_main')
    e('.p2align 12')
    e('L_main:')
    stamp(kind='pq')
    rd = []
    for s in range(4):
        for t in range(8):
            for hh in range(2):
                rd.append(f'ds_read_b64_tr_b16 {ar(16*t+4*s+2*hh,2)}, v{vTR[t&3]} offset:{WWAVE*s+1024*hh+128*(t>>2)}')
    def sfr(c, k): return f'ds_read_b128 {SF(c,k)}, v{vCL[c]} offset:{VEC + 128*(k&1) + 512*(k>>1)}'
    e('s_waitcnt vmcnt(7)')
    stamp(kind='pqr')
    for Tt in range(2):
        for s in range(4):
            e(f'ds_read_b128 {vr(WRAW+16*Tt+4*s,4)}, v{vWW[s]} offset:{(4096+256)*Tt}')
    if 'b1early' in OPTS: e('s_barrier')
    e('s_waitcnt vmcnt(4)')
    stamp(kind='r')
    e(f'ds_write_b32 v{vK4}, v{vSH} offset:{VHN}')
    for s in range(4):
        e(f'ds_read_b128 {vr(HB+4*s,4)}, v{vHB} offset:{VHN+64*s}')
    e(f'v_lshlrev_b32 v{vSB}, 16, v{vSB2}')
    e(f'v_and_b32 v{vSB2}, 0xffff0000, v{vSB2}')
    e(f'ds_write_b64 v{vAB}, {vr(vSB,2)} offset:{VB}')
    e(f'ds_write_b32 v{vAH}, v{vSH} offset:{VH}')
    e(f'ds_write_b32 v{vAP}, v{vSP} offset:{VP}')
    for t in range(8):
        e(f'ds_read_b128 {vr(BIAS+4*t,4)}, v{vHB} offset:{VB+64*t}')
    stamp(kind='r')
    if 'b1early' not in OPTS: e('s_barrier')
    stamp(kind='pr')
    e('s_waitcnt lgkmcnt(11)')
    for Tt in range(2):
        for s in range(4):
            c = '0' if s == 0 else vr(UA+4*Tt, 4)
            e(f'v_mfma_f32_16x16x32_bf16 {vr(UA+4*Tt,4)}, {vr(HB+4*s,4)}, {vr(WRAW+16*Tt+4*s,4)}, {c}')
            e(rd[2*(4*Tt + s)]); e(rd[1 + 2*(4*Tt + s)])
    stamp(kind='r')
    for i in range(16, 23): e(rd[i])
    e(f'v_cvt_pk_bf16_f32 v{t2}, v{UA}, v{UA+4}')
    e(f'ds_write_b16 v{vAU}, v{t2} offset:{VU}')
    e(f'ds_write_b16_d16_hi v{vAU}, v{t2} offset:{VU+32}')
    for x in rd[23:40]: e(x)
    e('s_waitcnt lgkmcnt(15)')
    e('s_barrier')
    e(sfr(0, 2)); e(sfr(0, 3))
    for x in rd[40:]: e(x)
    stamp(kind='r')
    for q in range(4, 7): rowdma(q)
    e('s_cmp_eq_u32 s3, 4')
    global DEFER
    DEFER = [sfr(0, 0), sfr(0, 1)] + [sfr(c, k) for c in range(1, 4) for k in (2, 3, 0, 1)]
    stamp(kind='pr')
    return vXA

def main_phase(vXA):
    seq = []; edges = []; mem = []
    def a(s, info=None):
        x = Ins(s); x.info = info; seq.append(x); return x
    def load_set(S, addrs, vmw, earliest, lat):
        base = RS[S]
        w = a(f's_waitcnt vmcnt({vmw})', ('early', earliest)); mem.append(w)
        rd = [a(f'ds_read_b128 {vr(base+16+4*s,4)}, v{addrs[s]}') for s in range(4)]
        mem.extend(rd)
        nd = 0
        if lat:
            wl = a('s_waitcnt lgkmcnt(0)'); mem.append(wl); edges.append((rd[3], wl, lat))
        for s in range(4):
            if not lat:
                wl = a(f's_waitcnt lgkmcnt({3-s+nd})'); mem.append(wl)
            for i in range(4 * s, 4 * s + 4):
                x = a(f'v_lshlrev_b32 v{base+2*i}, 16, v{base+16+i}'); edges.append((wl, x, 0))
                x = a(f'v_and_b32 v{base+2*i+1}, 0xffff0000, v{base+16+i}'); edges.append((wl, x, 0))
    prn = [0]
    def gen(t):
        P, Dp, p = TILES[t]
        for s in range(4):
            for i in range(4):
                q = PR + 2 * (prn[0] % 4); prn[0] += 1
                for h in range(2):
                    r = 8 * s + 2 * i + h
                    if p == 'id': a(f'v_mul_f32 v{q+h}, v{RS[Dp]+r}, v{RS[P]+r}')
                    else: a(f'v_mul_f32_dpp v{q+h}, v{RS[Dp]+r}, v{RS[P]+r} {p}{FULL}')
                a(f'v_cvt_pk_bf16_f32 v{BF[t&1]+4*s+i}, v{q}, v{q+1}')
    load_set('X', vXA, 3, 0, 0)
    wdef = {}
    sp = optval('sp', 5)
    for i in range(0, len(DEFER), 2):
        d0 = a(DEFER[i], ('early', 20 + sp * i)); d1 = a(DEFER[i + 1], ('early', 20 + sp * (i + 1)))
        w = a('s_waitcnt lgkmcnt(0)'); edges.append((d1, w, 10))
        mem.extend([d0, d1, w])
        wdef[i // 2] = w
    for t in range(NT):
        if t == TY: load_set('Y', [YA + k for k in range(4)], 0, optval('ye', 170), 24)
        if t == TZ: load_set('Z', [ZA + k for k in range(4)], 0, optval('ze', 300), 24)
        gen(t)
        G, c = t // 4, t % 4
        d = vr(DD + 4 * G, 4)
        for k in range(2):
            x = a(f'v_smfmac_f32_16x16x64_bf16 {d}, {SF(c,2+k)}, {vr(BF[t&1]+8*k,8)}, v{SIDX}', ('S', t, 36 * t + 18 + 9 * k))
            if 1 <= t <= 3: edges.append((wdef[2 * t - 1], x, 0))
        for m in range(8):
            acc = vr(ACC + 4 * m, 4)
            for s in range(4):
                cc = vr(BIAS + 4 * m, 4) if s == 0 else acc
                a(f'v_mfma_f32_16x16x32_bf16 {acc}, {WF(m,s)}, {vr(BF[t&1]+4*s,4)}, {cc}', ('M', t, m, s, 36 * t + 9 * s + m))
            for h in range(2):
                a(f'v_cvt_pk_bf16_f32 v{PK+2*m+h}, |v{ACC+4*m+2*h}|, |v{ACC+4*m+2*h+1}|')
            if m % 4 == 3:
                k = m // 4
                x = a(f'v_smfmac_f32_16x16x64_bf16 {d}, {SF(c,k)}, {vr(PK+8*k,8)}, v{SIDX}', ('S', t, 36 * t + 40 + 4 * k))
                if t <= 3: edges.append((wdef[2 * t], x, 0))
        if c == 3 or t == NT - 1:
            a(f'v_add_f32 v{DD+4*G}, v{DD+4*G}, v{DD+4*G+1}')
            a(f'v_add_f32 v{DD+4*G+2}, v{DD+4*G+2}, v{DD+4*G+3}')
            if G == 2: a(f'v_max3_f32 v{VM}, v{DD}, v{DD+4}, v{DD+8}')
            if G == 4:
                E = lambda G: DD + 4 * G
                Q = lambda G: DD + 4 * G + 2
                ML, F = YA, YA + 1
                a(f'v_max3_f32 v{VM}, v{VM}, v{DD+12}, v{DD+16}')
                a(f'v_mul_f32 v{ML}, v{VM}, v{VC}')
                for r in (8, 4, 2, 1):
                    a(f'v_max_f32_dpp v{VM}, v{VM}, v{VM} row_ror:{r}{FULL}')
                a(f'v_max_f32_dpp v{VM}, v{VM}, v{VM} row_bcast:15 row_mask:0xa bank_mask:0xf')
                a(f'v_max_f32_dpp v{VM}, v{VM}, v{VM} row_bcast:31 row_mask:0xc bank_mask:0xf')
                a(f'v_readlane_b32 s14, v{VM}, 63')
                a(f'v_mul_f32 v{VT0}, s14, v{VC}')
                a(f'v_sub_f32 v{F}, v{ML}, v{VT0}')
                a(f'v_exp_f32 v{F}, v{F}')
                for g2 in range(5):
                    a(f'v_fma_f32 v{E(g2)}, v{E(g2)}, v{VC}, -v{ML}')
                    a(f'v_exp_f32 v{E(g2)}, v{E(g2)}')
                a(f'v_add_f32 v{VT1}, v{E(0)}, v{E(1)}')
                a(f'v_mul_f32 v{VT2}, v{E(0)}, v{Q(0)}')
                a(f'v_fmac_f32 v{VT2}, v{E(1)}, v{Q(1)}')
                for g2 in range(2, 5):
                    a(f'v_add_f32 v{VT1}, v{VT1}, v{E(g2)}')
                    a(f'v_fmac_f32 v{VT2}, v{E(g2)}, v{Q(g2)}')
                a(f'v_mul_f32 v{VT1}, v{VT1}, v{F}')
                a(f'v_mul_f32 v{VT2}, v{VT2}, v{F}')
                for r in (8, 4, 2, 1):
                    a(f'v_add_f32_dpp v{VT1}, v{VT1}, v{VT1} row_ror:{r}{FULL}')
                    a(f'v_add_f32_dpp v{VT2}, v{VT2}, v{VT2} row_ror:{r}{FULL}')
                for b, mk in ((15, '0xa'), (31, '0xc')):
                    a(f'v_add_f32_dpp v{VT1}, v{VT1}, v{VT1} row_bcast:{b} row_mask:{mk} bank_mask:0xf')
                    a(f'v_add_f32_dpp v{VT2}, v{VT2}, v{VT2} row_bcast:{b} row_mask:{mk} bank_mask:0xf')
                a(f'v_readlane_b32 s15, v{VT1}, 63')
                a(f'v_readlane_b32 s34, v{VT2}, 63')
    u0, u1, M5 = YA + 2, YA + 3, ZA
    a(f'v_max_f32 v{M5}, s14, v{E(5)}')
    for r in (4, 2, 1):
        a(f'v_max_f32_dpp v{M5}, v{M5}, v{M5} row_ror:{r}{FULL}')
    a(f'v_mul_f32 v{u0}, v{M5}, v{VC}')
    a(f'v_fma_f32 v{E(5)}, v{E(5)}, v{VC}, -v{u0}')
    a(f'v_sub_f32 v{u1}, v{VT0}, v{u0}')
    a(f'v_exp_f32 v{E(5)}, v{E(5)}')
    a(f'v_exp_f32 v{u1}, v{u1}')
    a(f'v_mul_f32 v{Q(5)}, v{E(5)}, v{Q(5)}')
    for r in (4, 2, 1):
        a(f'v_add_f32_dpp v{E(5)}, v{E(5)}, v{E(5)} row_ror:{r}{FULL}')
        a(f'v_add_f32_dpp v{Q(5)}, v{Q(5)}, v{Q(5)} row_ror:{r}{FULL}')
    a(f'v_fmac_f32 v{E(5)}, s15, v{u1}')
    a(f'v_fmac_f32 v{Q(5)}, s34, v{u1}')
    a(f'v_rcp_f32 v{E(5)}, v{E(5)}')
    a(f'v_mul_f32 v{Q(5)}, v{Q(5)}, v{E(5)}')
    a(f'v_cvt_pk_bf16_f32 v{Q(5)}, v{Q(5)}, v{Q(5)}')
    a(f'buffer_store_short v{Q(5)}, v{VOFF}, s[36:39], 0 offen')
    for x, y in zip(mem, mem[1:]): edges.append((x, y, 0))
    nodes, byins = build_dag(seq, edges)
    BIG = 10 ** 6
    for n in reversed(nodes):
        inf = n.ins.info
        if n.ins.kind == 'mfma': n.prio = inf[-1]
        else:
            lat = lambda q: (1 + max(d for p, d in q.preds if p is n)) * optval('lw', 40) / 100.0
            n.prio = min([q.prio - lat(q) for q in n.succs], default=36 * NT + optval('end', 20))
        if inf and inf[0] == 'early': n.earliest = inf[1]
    pend_m = [n for n in nodes if n.ins.kind == 'mfma']
    pend_v = sorted([n for n in nodes if n.ins.kind != 'mfma'], key=lambda n: (n.prio, n.idx))
    pos = 0; t = 0; pipe = 0; nm = 0; last = None; out = []; nops = 0; tile_t = {}
    def ready(n):
        return n.earliest <= nm and all(p.pos is not None and pos - p.pos - 1 >= d for p, d in n.preds)
    def pick_m():
        win = pend_m[:80]
        rd = [n for n in win if ready(n)]
        if not rd: return None
        if last is not None and last[0] == 'M' and last[3] < 3:
            for n in rd:
                i = n.ins.info
                if i[0] == 'M' and i[1:3] == last[1:3]: return n
        sm = [n for n in rd if n.ins.info[0] == 'S']
        mm = [n for n in rd if n.ins.info[0] == 'M']
        if sm and not (last is not None and last[0] == 'S' and mm): return sm[0]
        return min(mm, key=lambda n: n.ins.info[1:4])
    def pick_v():
        for n in pend_v[:400]:
            if ready(n): return n
        return None
    FREE = 'nofree' not in OPTS
    while pend_m or pend_v:
        if FREE and out and out[-1].kind == 'mfma' and out[-1].op.startswith('v_mfma'):
            f = next((n for n in pend_v if n.ins.kind in ('ds', 'wait') and ready(n)), None)
            if f is not None:
                f.pos = pos; pend_v.remove(f); out.append(f.ins); pos += 1
                continue
        m = pick_m(); v = None
        if m is None or t < pipe: v = pick_v()
        if v is not None:
            v.pos = pos; pend_v.remove(v); out.append(v.ins); pos += 1; t += 8 if v.ins.op in ('v_exp_f32', 'v_rcp_f32') else 4
        elif m is not None:
            t = max(t, pipe)
            m.pos = pos; pend_m.remove(m); out.append(m.ins); pos += 1
            pipe = t + 16; t += optval('sc', 12) if m.ins.info[0] == 'S' else 8; nm += 1; last = m.ins.info
            tile_t.setdefault(last[1], t)
        else:
            out.append(Ins('s_nop 0')); pos += 1; t += 4; nops += 1
    if VERB:
        print('model cycles', t, 'nops', nops, 'tile starts', [tile_t[k] for k in sorted(tile_t)])
    for x in out:
        if x.kind == 'nop' and prog[-1].kind == 'nop' and int(prog[-1].ops[0]) < 15:
            prog[-1] = Ins(f's_nop {int(prog[-1].ops[0]) + 1}')
        else:
            prog.append(x)
            if TIMING and x.text.startswith('s_waitcnt vmcnt(3)'): stamp(kind='a')
            inf = getattr(x, 'info', None)
            if inf and inf[0] == 'M' and inf[2:4] == (0, 0) and (inf[1] % 2 == 1 or inf[1] < 4): stamp(kind='t')

def tail():
    if TIMING:
        stamp(kind='a'); stamp(True)
        e('s_waitcnt lgkmcnt(0)')
        e('s_mov_b32 s58, 0x1000000'); e('s_mov_b32 s59, 0x00020000')
        e('s_mul_i32 s9, s4, 128')
        e(f'v_mov_b32 v{VT0}, 0x7ffffff0')
        e(f'v_writelane_b32 v{VT0}, s9, 0')
        for i in range(stampn[0]):
            e(f'v_mov_b32 v{VT1}, s{60+2*i}')
            e(f'buffer_store_dword v{VT1}, v{VT0}, s[56:59], 0 offen offset:{4*i}')
    e('L_end:')

vXA = prologue()
n_pro = len(prog)
main_phase(vXA)
tail()
prog, nins = fix_hazards(prog, VERB)
errs = check_waitcnt(prog)
assert not errs, '\n'.join(errs[:20])
if VERB: print('instructions', len(prog), 'inserted states', nins, 'stamps', stampn[0])

def render(prog):
    body = '\n'.join(x.text if x.kind == 'label' else '    ' + x.text for x in prog)
    return HDR + HEAD + body + FOOT

HEAD = f"""; @launch grid=(256,1,1) block=(256,1,1) lds={LDS_TOTAL}
.amdgcn_target "amdgcn-amd-amdhsa--gfx950"
.text
.globl standalone__factorization_afm__recsys_kernel
.p2align 8
.type standalone__factorization_afm__recsys_kernel,@function
standalone__factorization_afm__recsys_kernel:
"""
FOOT = """
s_endpgm
.section .rodata,"a"
.p2align 6
.amdhsa_kernel standalone__factorization_afm__recsys_kernel
  .amdhsa_next_free_vgpr 448
  .amdhsa_next_free_sgpr 102
  .amdhsa_accum_offset 256
  .amdhsa_group_segment_fixed_size 0
  .amdhsa_kernarg_size 88
  .amdhsa_user_sgpr_count 2
  .amdhsa_user_sgpr_kernarg_segment_ptr 1
  .amdhsa_system_sgpr_workgroup_id_x 1
  .amdhsa_float_denorm_mode_32 3
.end_amdhsa_kernel
"""
def sizes(ins):
    import subprocess, tempfile, re
    d = tempfile.mkdtemp()
    open(d + '/a.s', 'w').write('.amdgcn_target "amdgcn-amd-amdhsa--gfx950"\n.text\n' + '\n'.join(x.text for x in ins) + '\n')
    subprocess.run(['clang', '-x', 'assembler', '-target', 'amdgcn-amd-amdhsa', '-mcpu=gfx950', '-c', d + '/a.s', '-o', d + '/a.o'], check=True)
    o = subprocess.run(['llvm-objdump', '-d', '--mcpu=gfx950', d + '/a.o'], capture_output=True, text=True).stdout
    r = [4 * len(m.group(1).split()) for m in re.finditer(r'// [0-9A-F]{12}: ([0-9A-F ]+)', o)]
    assert len(r) == len(ins)
    return r
if 'nohop' not in OPTS:
    i0 = next(i for i, x in enumerate(prog) if x.text == 'L_main:') + 1
    body = [x for x in prog[i0:] if x.kind != 'label']
    sz = dict(zip(map(id, body), sizes(body)))
    newp = prog[:i0]; off = 0; k = 0; prev = None
    for x in prog[i0:]:
        if k < 4 and off >= 4096 * (k + 1) + optval('so', 0) and prev is not None and prev.op.startswith('v_mfma') and x.kind == 'valu':
            newp += [Ins(f'L_stub{k}:'), Ins('s_cbranch_scc1 L_main')]; off += 4; k += 1
        newp.append(x); off += sz.get(id(x), 0); prev = x
    assert k == 4, k
    prog = newp
    if VERB: print('main bytes', off)
open(OUT, 'w').write(render(prog))
```

```python
import sys, os
sys.path.insert(0, os.path.dirname(os.path.abspath(__file__)))
from asmlib import Ins, fix_hazards, check_waitcnt, build_dag

OUT = sys.argv[1] if len(sys.argv) > 1 else 'standalone__factorization_afm__recsys.s'
OPTS = set(sys.argv[2].split(',')) if len(sys.argv) > 2 else set()
TIMING = 'time' in OPTS
VERB = 'v' in OPTS
def optval(name, default):
    for o in OPTS:
        if o.startswith(name + '='):
            return int(o.split('=')[1])
    return default

HDR = open('standalone__factorization_afm__recsys.s.ref').read().split('; Override launch')[0]

XF = list(range(16))
YF = [22, 23, 17, 23, 25, 18, 24, 19, 21, 20, 23, 25, 24, 22, 16, 21]
ZF = [23, 20, 20, 16, 22, 19, 21, 16, 17, 18, 22, 18, 25, 24, 17, 19]
def pat(p):
    if p == 'id': return list(range(16))
    k, v = p.split(':'); v = int(v)
    return [(n - v) % 16 for n in range(16)] if k == 'row_ror' else [v] * 16
TILES = [('X', 'X', f'row_ror:{r}') for r in range(1, 8)]
TILES += [('X', 'Y', f'row_newbcast:{YF.index(f)}') for f in range(16, 26)]
TILES += [('Y', 'Z', 'row_ror:13'), ('Y', 'Z', 'row_ror:5'), ('Y', 'Z', 'id')]
TILES += [('X', 'X', 'row_ror:8')]
TY, TZ = 7, 17
NT = len(TILES)
FS = {'X': XF, 'Y': YF, 'Z': ZF}
seen = set(); VALID = []
for a, b, p in TILES:
    v = []
    for n in range(16):
        i, j = FS[a][n], FS[b][pat(p)[n]]
        assert i != j
        key = (min(i, j), max(i, j))
        v.append(key not in seen); seen.add(key)
    VALID.append(v)
assert len(seen) == 325 and sum(map(sum, VALID)) == 325
NG = (NT + 3) // 4
def group_mask(G):
    m = 0
    for c in range(4):
        t = 4 * G + c
        for n in range(16):
            if t < NT and VALID[t][n]: m |= 1 << (16 * c + n)
    return m

WWAVE = 8704
VEC = 4 * WWAVE
ROWS = VEC + 2560; ROWB = 7168
VH, VZ0, VU, VP, VZ1, VB, VHN = VEC, VEC + 256, VEC + 512, VEC + 768, VEC + 1024, VEC + 1792, VEC + 2304
LDS_TOTAL = ROWS + 4 * ROWB

SIDX = 1
YA, ZA = 2, 6
VC, VOFF, VM, VT0, VT1, VT2 = 10, 11, 12, 13, 14, 15
RS = {'X': 16, 'Y': 48, 'Z': 80}
BIAS, BF, ACC, PK, PR, DD = 112, [144, 160], 176, 208, 224, 232
def vr(a, n=1): return f'v{a}' if n == 1 else f'v[{a}:{a+n-1}]'
def ar(a, n=1): return f'a{a}' if n == 1 else f'a[{a}:{a+n-1}]'
def WF(t, s): return ar(16 * t + 4 * s, 4)
def SF(c, k): return ar(128 + 16 * c + 4 * k, 4)
FULL = ' row_mask:0xf bank_mask:0xf'

prog = []
def e(s, tag=None):
    x = Ins(s, tag); prog.append(x); return x
stampn = [0]
AMPA, AMPB, AMPK = optval('ampa', -1), optval('ampb', -1), optval('ampk', 8)
def amp(pt):
    if pt == AMPA: e('s_memrealtime s[90:91]')
    if pt == AMPB: e('s_memrealtime s[92:93]')
def stamp(real=False, kind='p'):
    mode = 't' if 'tt' in OPTS else 'q' if 'tq' in OPTS else 'r' if 'tr' in OPTS else 'p'
    if TIMING and (real or kind == 'a' or mode in kind):
        e(f's_mem{"real" if real else ""}time s[{60+2*stampn[0]}:{61+2*stampn[0]}]'); stampn[0] += 1

POS = [16, 17, 18, 19, 20, 21, 23, 24, 25, 27]
def nib(F):
    P = [POS[f - 16] - 16 for f in F]
    lo = sum(P[n] << (4 * n) for n in range(8)); hi = sum(P[n + 8] << (4 * n) for n in range(8))
    return lo, hi

def prologue():
    T = iter(range(48, 80))
    vN, vG, vK, vIO, vK4, vHB, vWD = [next(T) for _ in range(7)]
    vCS = [next(T) for _ in range(4)]
    vWW = [next(T) for _ in range(4)]
    vAH, vAP, vAU, vAB, vAZ, t0, t1, t2, vPF, vTL = [next(T) for _ in range(10)]
    vCL = [VM, VT0, VT1, VT2]
    vIDX = list(range(PK, PK + 7))
    vXA = list(range(PK + 8, PK + 12))
    vSH, vSP, vSB, vSB2 = PK + 12, PK + 13, PK + 14, PK + 15
    WRAW = RS['Z']; HB = BF[0]; UA = ACC; ZER = BF[1]
    vTR = list(range(PR, PR + 8))

    M = []
    m = M.append
    m('s_mov_b32 s38, 2048'); m('s_mov_b32 s39, 0x00020000')
    m(f'v_lshlrev_b32 v{vHB}, 4, v{vG}')
    m(f'v_and_b32 v{t0}, 3, v{vN}')
    m(f'v_lshlrev_b32 v{t0}, 1, v{t0}')
    m(f'v_xor_b32 v{t0}, v{t0}, v{vG}')
    m(f'v_lshlrev_b32 v{t0}, 4, v{t0}')
    m(f'v_lshrrev_b32 v{t1}, 3, v{vN}')
    m(f'v_lshlrev_b32 v{t1}, 7, v{t1}')
    m(f'v_lshl_add_u32 v{t1}, v{vN}, 8, v{t1}')
    m(f'v_add_u32 v{t1}, s9, v{t1}')
    m(f'v_add_u32 v{vWW[0]}, v{t0}, v{t1}')
    for k in range(1, 4):
        m(f'v_xor_b32 v{t2}, {64*k}, v{t0}')
        m(f'v_add_u32 v{vWW[k]}, v{t2}, v{t1}')
    m(f'v_lshrrev_b32 v{t0}, 2, v{vN}')
    m(f'v_mul_u32_u24 v{t1}, {2048+128}, v{vG}')
    m(f'v_lshl_add_u32 v{t1}, v{t0}, 8, v{t1}')
    m(f'v_and_b32 v{t2}, 3, v{vN}')
    m(f'v_lshl_add_u32 v{t1}, v{t2}, 3, v{t1}')
    m(f'v_lshlrev_b32 v{t0}, 5, v{t0}')
    for t in range(4):
        if t: m(f'v_xor_b32 v{t2}, {32*t}, v{t0}')
        m(f'v_add_u32 v{vTR[t]}, v{t2 if t else t0}, v{t1}')
    m(f'v_and_b32 v{t0}, 1, v{vK}')
    m(f'v_lshlrev_b32 v{t0}, 2, v{t0}')
    m(f'v_bfe_u32 v{t1}, v{vK}, 1, 2')
    m(f'v_and_b32 v{t2}, 0x38, v{vK}')
    m(f'v_or3_b32 v{t1}, v{t0}, v{t1}, v{t2}')
    m(f'v_lshlrev_b32 v{vAP}, 2, v{t1}')
    m(f'v_and_b32 v{t1}, 0x32, v{vK}')
    m(f'v_bfe_u32 v{t2}, v{vK}, 3, 1')
    m(f'v_or3_b32 v{t0}, v{t0}, v{t1}, v{t2}')
    m(f'v_and_b32 v{t1}, 4, v{vK}')
    m(f'v_lshl_or_b32 v{t0}, v{t1}, 1, v{t0}')
    m(f'v_lshlrev_b32 v{vAH}, 2, v{t0}')
    m(f'v_and_b32 v{t0}, 2, v{vN}')
    m(f'v_lshlrev_b32 v{t0}, 3, v{t0}')
    m(f'v_and_b32 v{t1}, 12, v{vN}')
    m(f'v_and_b32 v{t2}, 1, v{vN}')
    m(f'v_lshl_or_b32 v{t0}, v{t2}, 1, v{t0}')
    m('s_lshl_b32 s8, s3, 6')
    m(f'v_or3_b32 v{vAU}, v{t0}, v{t1}, s8')
    m('s_mov_b32 s12, 0xaaaa')
    m(f'v_mov_b32 v{SIDX}, 0x4444')
    m(f'v_mad_u32_u24 v{SIDX}, v{t2}, s12, v{SIDX}')
    m(f'v_lshlrev_b32 v{t2}, 4, v{t2}')
    m(f'v_lshl_or_b32 v{t2}, v{vG}, 5, v{t2}')
    m(f'v_and_b32 v{t0}, 2, v{vN}')
    m(f'v_lshl_or_b32 v{t2}, v{t0}, 7, v{t2}')
    m(f'v_mov_b32 v{t1}, 1024')
    for c in range(4):
        m(f's_mov_b32 s12, {0x000f000f << (4*c):#x}'); m('s_mov_b32 s13, s12')
        m(f'v_cndmask_b32 v{vCL[c]}, v{t1}, v{t2}, s[12:13]')
    m(f'v_lshlrev_b32 v{vAB}, 3, v{vK}')
    m(f'v_min_u32 v{t0}, 1, v{vG}')
    m(f'v_lshlrev_b32 v{t0}, 9, v{t0}')
    m(f'v_lshl_add_u32 v{vAZ}, v{vK}, 4, v{t0}')
    for r in range(4): m(f'v_mov_b32 v{ZER+r}, 0')
    m(f'ds_write_b128 v{vAZ}, {vr(ZER,4)} offset:{VZ0}')
    m(f'v_lshl_add_u32 v{vXA[0]}, v{vN}, 8, v{vCS[0]}')
    m(f'v_add_u32 v{vXA[0]}, s5, v{vXA[0]}')
    for k in range(1, 4): m(f'v_xor_b32 v{vXA[k]}, {64*k}, v{vXA[0]}')
    m(f'v_and_b32 v{t0}, 7, v{vN}')
    m(f'v_lshlrev_b32 v{t0}, 2, v{t0}')
    m('s_mov_b32 s12, 0x00ff00ff'); m('s_mov_b32 s13, s12')
    m('s_add_u32 s8, s5, 4096')
    for F, A in ((YF, YA), (ZF, ZA)):
        lo, hi = nib(F)
        m(f'v_mov_b32 v{t1}, {hi:#x}')
        m(f'v_mov_b32 v{t2}, {lo:#x}')
        m(f'v_cndmask_b32 v{t1}, v{t1}, v{t2}, s[12:13]')
        m(f'v_bfe_u32 v{t1}, v{t1}, v{t0}, 4')
        m(f'v_xor_b32 v{t2}, v{t1}, v{vG}')
        m(f'v_lshlrev_b32 v{t2}, 4, v{t2}')
        m(f'v_lshl_add_u32 v{t2}, v{t1}, 8, v{t2}')
        m(f'v_add_u32 v{A}, s8, v{t2}')
        for k in range(1, 4): m(f'v_xor_b32 v{A+k}, {64*k}, v{A}')
    m(f'v_mov_b32 v{t1}, 0xff800000')
    for G in range(NG):
        gm = group_mask(G)
        if gm == (1 << 64) - 1 or G == NG - 1:
            m(f'v_mov_b32 v{DD+4*G}, 0')
        else:
            m(f's_mov_b32 s12, {gm & 0xffffffff:#x}'); m(f's_mov_b32 s13, {gm >> 32:#x}')
            m(f'v_cndmask_b32 v{DD+4*G}, v{t1}, 0, s[12:13]')
        for r in range(1, 4): m(f'v_mov_b32 v{DD+4*G+r}, 0')
    m(f'v_mov_b32 v{VC}, 0x3f38aa3b')
    m('s_lshl_b32 s8, s4, 1')
    m(f'v_mov_b32 v{VOFF}, 0x7ffffff0')
    m(f'v_writelane_b32 v{VOFF}, s8, 0')
    def math(k):
        for _ in range(min(k, len(M))): e(M.pop(0))

    stamp(True); stamp(kind='a'); amp(0)
    e('s_load_dwordx16 s[16:31], s[0:1], 0')
    e('s_load_dwordx2 s[36:37], s[0:1], 64')
    if TIMING: e('s_load_dwordx2 s[56:57], s[0:1], 80')
    e('s_cmp_ge_u32 s2, 256')
    e('s_cbranch_scc1 L_end')
    e('s_getpc_b64 s[10:11]')
    e('L_pc:')
    e(f'v_lshlrev_b32 v{t0}, 7, v0')
    e(f'v_min_u32 v{t0}, L_end-L_pc, v{t0}')
    if 'nopf' in OPTS: e(f'v_mov_b32 v{t0}, 0')
    e(f'global_load_dword v{vPF}, v{t0}, s[10:11]')
    e(f'v_lshrrev_b32 v{t1}, 6, v0')
    e(f'v_and_b32 v{vN}, 15, v0')
    e(f'v_readfirstlane_b32 s3, v{t1}')
    e(f'v_bfe_u32 v{vG}, v0, 4, 2')
    e(f'v_and_b32 v{vK}, 63, v0')
    e('s_lshl_b32 s4, s2, 2')
    e('s_add_u32 s4, s4, s3')
    e('s_mul_i32 s6, s4, 104')
    e(f'v_mul_u32_u24 v{vIO}, 28, v{vG}')
    e(f'v_min_u32 v{vIO}, 76, v{vIO}')
    e(f'v_add_u32 v{vIO}, s6, v{vIO}')
    e('s_lshl_b32 s7, s3, 13')
    e(f's_mul_i32 s9, s3, {WWAVE}')
    e(f'v_lshlrev_b32 v{t0}, 1, v{vG}')
    e(f'v_xor_b32 v{t0}, v{t0}, v{vN}')
    e(f'v_lshlrev_b32 v{t0}, 4, v{t0}')
    e(f'v_lshl_add_u32 v{vWD}, v{vG}, 8, v{t0}')
    e('s_lshr_b32 s8, s2, 3')
    for j in range(4):
        if 'norot' in OPTS: e(f's_mov_b32 s12, {j}')
        else: e(f's_add_u32 s12, s8, {j}'); e('s_and_b32 s12, s12, 3')
        e(f's_lshl_b32 s13, s12, 11'); e(f's_add_u32 s{44+j}, s13, s7')
        e(f's_mul_i32 s13, s12, 2176'); e(f's_add_u32 s{48+j}, s13, s9')
    e('s_mov_b32 m0, s48')
    e(f'v_lshlrev_b32 v{vK4}, 2, v{vK}')
    e(f's_mul_i32 s5, s3, {ROWB}')
    e(f's_add_u32 s5, s5, {ROWS}')
    e('s_mov_b32 s42, 25600000'); e('s_mov_b32 s43, 0x00020000')
    e('s_mov_b32 s54, 32768'); e('s_mov_b32 s55, 0x00020000')
    e(f'v_xor_b32 v{t0}, v{vN}, v{vG}')
    e(f'v_lshlrev_b32 v{vCS[0]}, 4, v{t0}')
    for k in range(1, 4): e(f'v_xor_b32 v{vCS[k]}, {64*k}, v{vCS[0]}')
    ST = optval('st', 0)
    if ST in (2, 3):
        e('s_lshr_b32 s14, s2, 3'); e('s_lshl_b32 s14, s14, 2'); e('s_add_u32 s14, s14, s3'); e('s_and_b32 s14, s14, 15')
        e('s_mul_i32 s14, s14, 1600000')
    if ST == 4:
        e('s_mul_i32 s14, s3, 6400000')
    if ST in (6, 7):
        e('s_lshr_b32 s14, s2, 3')
        if ST == 6: e('s_lshl_b32 s14, s14, 2'); e('s_add_u32 s14, s14, s3')
        e('s_and_b32 s14, s14, 31')
        e('s_sub_u32 s15, s14, 16')
        e('s_cmp_lt_u32 s15, 5')
        e('s_cselect_b32 s12, 0, 1600000')
        e('s_cselect_b32 s13, s15, -3')
        e('s_lshl_b32 s13, s13, 3')
        e('s_add_u32 s13, s13, 32')
        e('s_load_dwordx2 s[34:35], s[0:1], s13')
        e('s_and_b32 s14, s14, 15')
        e('s_mul_i32 s14, s14, s12')
    if ST == 5:
        e(f'v_mul_u32_u24 v{vTL}, 1600000, v{vN}')
    stamp(kind='q')
    e('s_waitcnt lgkmcnt(0)')
    stamp(kind='pq'); amp(1)
    e(f'global_load_dwordx4 {vr(vIDX[0],4)}, v{vIO}, s[16:17] nt')
    if ST == 1:
        for k in range(16):
            e(f's_mov_b32 s14, {1600000*k}')
            e(f's_load_dword s15, s[18:19], s14')
    if ST in (2, 3): e(f's_load_dword s15, s[18:19], s14')
    if ST in (6, 7): e(f's_load_dword s15, s[34:35], s14')
    if ST == 4:
        for k in range(4):
            e(f's_load_dword s15, s[18:19], s14')
            e('s_add_u32 s14, s14, 1600000')
    if ST in (1, 2, 4):
        for p in (24, 28, 30, 26, 36): e(f's_load_dword s15, s[{p}:{p+1}], 0')
    if ST == 5:
        e(f'global_load_dword v{vTL}, v{vTL}, s[18:19] nt')
    e('s_mov_b32 s52, s24'); e('s_mov_b32 s53, s25')
    e(f'global_load_dwordx3 {vr(vIDX[4],3)}, v{vIO}, s[16:17] offset:16 nt')
    if 'idxw' in OPTS:
        e('s_waitcnt vmcnt(2)'); stamp(kind='q'); e('s_waitcnt vmcnt(0)'); stamp(kind='q')
    MI = optval('mi', 10)
    for i in range(8):
        if i and i % 2 == 0: e(f's_mov_b32 m0, s{48 + i//2}')
        if i >= 2: math(MI)
        e(f'buffer_load_dwordx4 v{vWD}, s[52:55], s{44 + i//2} offen offset:{1024*(i&1)} lds')
        if i % 2 == 1: stamp(kind='q')
    e('s_mov_b32 s40, s18'); e('s_mov_b32 s41, s19')
    math(MI)
    e(f'global_load_dword v{vSH}, v{vK4}, s[28:29]')
    math(MI)
    e(f'global_load_dword v{vSP}, v{vK4}, s[30:31]')
    math(MI)
    e(f'global_load_dword v{vSB2}, v{vK4}, s[26:27]')
    VT = optval('vt', 0)
    if VT:
        e(f'v_and_b32 v{vTL}, 3, v{vN}')
        e(f'v_lshl_add_u32 v{vTL}, s3, 2, v{vTL}')
        e(f'v_mul_u32_u24 v{vTL}, 1600000, v{vTL}')
        e('s_mul_i32 s14, s2, 4352')
        e(f'v_add_u32 v{vTL}, s14, v{vTL}')
        e(f'global_load_dword v{vTL}, v{vTL}, s[18:19]' + (' nt' if 'vnt' in OPTS else ''))
    math(optval('m2', 20))
    e(f's_mov_b32 m0, s5')
    stamp(kind='pq')
    e(f's_waitcnt vmcnt({11 + VT})')
    amp(2)
    stamp(kind='pq')
    def rowdma(q):
        if q: e(f's_add_u32 m0, s5, {1024*q}')
        e(f'v_lshl_add_u32 v{vIDX[q]}, v{vIDX[q]}, 8, v{vCS[q%4]}')
        if q == 5: e('s_mov_b32 exec_hi, 0xffff0000')
        e(f'buffer_load_dwordx4 v{vIDX[q]}, s[40:43], 0 offen nt lds')
        if q == 6: e('s_mov_b32 exec_hi, -1')
    for q in range(4): rowdma(q)
    stamp(kind='pq')
    math(1000)
    if 'nohop' not in OPTS:
        for k in range(4):
            e(f's_cmp_eq_u32 s3, {k}')
            e(f's_cbranch_scc1 L_stub{k}')
    e('s_branch L_main')
    e('.p2align 12')
    e('L_main:')
    stamp(kind='pq')
    rd = []
    for s in range(4):
        for t in range(8):
            for hh in range(2):
                rd.append(f'ds_read_b64_tr_b16 {ar(16*t+4*s+2*hh,2)}, v{vTR[t&3]} offset:{WWAVE*s+1024*hh+128*(t>>2)}')
    def sfr(c, k): return f'ds_read_b128 {SF(c,k)}, v{vCL[c]} offset:{VEC + 128*(k&1) + 512*(k>>1)}'
    e(f's_waitcnt vmcnt({7 + VT})')
    amp(5)
    stamp(kind='pqr')
    for Tt in range(2):
        for s in range(4):
            e(f'ds_read_b128 {vr(WRAW+16*Tt+4*s,4)}, v{vWW[s]} offset:{(4096+256)*Tt}')
    if 'b1early' in OPTS: e('s_barrier')
    e(f's_waitcnt vmcnt({4 + VT})')
    stamp(kind='r')
    e(f'ds_write_b32 v{vK4}, v{vSH} offset:{VHN}')
    for s in range(4):
        e(f'ds_read_b128 {vr(HB+4*s,4)}, v{vHB} offset:{VHN+64*s}')
    e(f'v_lshlrev_b32 v{vSB}, 16, v{vSB2}')
    e(f'v_and_b32 v{vSB2}, 0xffff0000, v{vSB2}')
    e(f'ds_write_b64 v{vAB}, {vr(vSB,2)} offset:{VB}')
    e(f'ds_write_b32 v{vAH}, v{vSH} offset:{VH}')
    e(f'ds_write_b32 v{vAP}, v{vSP} offset:{VP}')
    for t in range(8):
        e(f'ds_read_b128 {vr(BIAS+4*t,4)}, v{vHB} offset:{VB+64*t}')
    stamp(kind='r')
    if 'b1early' not in OPTS: e('s_barrier')
    stamp(kind='pr')
    e('s_waitcnt lgkmcnt(11)')
    for Tt in range(2):
        for s in range(4):
            c = '0' if s == 0 else vr(UA+4*Tt, 4)
            e(f'v_mfma_f32_16x16x32_bf16 {vr(UA+4*Tt,4)}, {vr(HB+4*s,4)}, {vr(WRAW+16*Tt+4*s,4)}, {c}')
            e(rd[2*(4*Tt + s)]); e(rd[1 + 2*(4*Tt + s)])
    stamp(kind='r')
    for i in range(16, 23): e(rd[i])
    e(f'v_cvt_pk_bf16_f32 v{t2}, v{UA}, v{UA+4}')
    e(f'ds_write_b16 v{vAU}, v{t2} offset:{VU}')
    e(f'ds_write_b16_d16_hi v{vAU}, v{t2} offset:{VU+32}')
    for x in rd[23:40]: e(x)
    e('s_waitcnt lgkmcnt(15)')
    e('s_barrier')
    e(sfr(0, 2)); e(sfr(0, 3))
    for x in rd[40:]: e(x)
    stamp(kind='r')
    for q in range(4, 7): rowdma(q)
    e('s_cmp_eq_u32 s3, 4')
    global DEFER
    DEFER = [sfr(0, 0), sfr(0, 1)] + [sfr(c, k) for c in range(1, 4) for k in (2, 3, 0, 1)]
    stamp(kind='pr'); amp(6)
    return vXA

def main_phase(vXA):
    seq = []; edges = []; mem = []
    def a(s, info=None):
        x = Ins(s); x.info = info; seq.append(x); return x
    def load_set(S, addrs, vmw, earliest, lat):
        base = RS[S]
        w = a(f's_waitcnt vmcnt({vmw})', ('early', earliest)); mem.append(w)
        rd = [a(f'ds_read_b128 {vr(base+16+4*s,4)}, v{addrs[s]}') for s in range(4)]
        mem.extend(rd)
        nd = 0
        if lat:
            wl = a('s_waitcnt lgkmcnt(0)'); mem.append(wl); edges.append((rd[3], wl, lat))
        for s in range(4):
            if not lat:
                wl = a(f's_waitcnt lgkmcnt({3-s+nd})'); mem.append(wl)
            for i in range(4 * s, 4 * s + 4):
                x = a(f'v_lshlrev_b32 v{base+2*i}, 16, v{base+16+i}'); edges.append((wl, x, 0))
                x = a(f'v_and_b32 v{base+2*i+1}, 0xffff0000, v{base+16+i}'); edges.append((wl, x, 0))
    prn = [0]
    def gen(t):
        P, Dp, p = TILES[t]
        for s in range(4):
            for i in range(4):
                q = PR + 2 * (prn[0] % 4); prn[0] += 1
                for h in range(2):
                    r = 8 * s + 2 * i + h
                    if p == 'id': a(f'v_mul_f32 v{q+h}, v{RS[Dp]+r}, v{RS[P]+r}')
                    else: a(f'v_mul_f32_dpp v{q+h}, v{RS[Dp]+r}, v{RS[P]+r} {p}{FULL}')
                a(f'v_cvt_pk_bf16_f32 v{BF[t&1]+4*s+i}, v{q}, v{q+1}')
    load_set('X', vXA, 3, 0, 0)
    wdef = {}
    sp = optval('sp', 5)
    for i in range(0, len(DEFER), 2):
        d0 = a(DEFER[i], ('early', 20 + sp * i)); d1 = a(DEFER[i + 1], ('early', 20 + sp * (i + 1)))
        w = a('s_waitcnt lgkmcnt(0)'); edges.append((d1, w, 10))
        mem.extend([d0, d1, w])
        wdef[i // 2] = w
    for t in range(NT):
        if t == TY: load_set('Y', [YA + k for k in range(4)], 0, optval('ye', 170), 24)
        if t == TZ: load_set('Z', [ZA + k for k in range(4)], 0, optval('ze', 300), 24)
        gen(t)
        G, c = t // 4, t % 4
        d = vr(DD + 4 * G, 4)
        for k in range(2):
            x = a(f'v_smfmac_f32_16x16x64_bf16 {d}, {SF(c,2+k)}, {vr(BF[t&1]+8*k,8)}, v{SIDX}', ('S', t, 36 * t + 18 + 9 * k))
            if 1 <= t <= 3: edges.append((wdef[2 * t - 1], x, 0))
        for m in range(8):
            acc = vr(ACC + 4 * m, 4)
            for s in range(4):
                cc = vr(BIAS + 4 * m, 4) if s == 0 else acc
                a(f'v_mfma_f32_16x16x32_bf16 {acc}, {WF(m,s)}, {vr(BF[t&1]+4*s,4)}, {cc}', ('M', t, m, s, 36 * t + 9 * s + m))
            for h in range(2):
                a(f'v_cvt_pk_bf16_f32 v{PK+2*m+h}, |v{ACC+4*m+2*h}|, |v{ACC+4*m+2*h+1}|')
            if m % 4 == 3:
                k = m // 4
                x = a(f'v_smfmac_f32_16x16x64_bf16 {d}, {SF(c,k)}, {vr(PK+8*k,8)}, v{SIDX}', ('S', t, 36 * t + 40 + 4 * k))
                if t <= 3: edges.append((wdef[2 * t], x, 0))
        if c == 3 or t == NT - 1:
            a(f'v_add_f32 v{DD+4*G}, v{DD+4*G}, v{DD+4*G+1}')
            a(f'v_add_f32 v{DD+4*G+2}, v{DD+4*G+2}, v{DD+4*G+3}')
            if G == 2: a(f'v_max3_f32 v{VM}, v{DD}, v{DD+4}, v{DD+8}')
            if G == 4:
                E = lambda G: DD + 4 * G
                Q = lambda G: DD + 4 * G + 2
                ML, F = YA, YA + 1
                a(f'v_max3_f32 v{VM}, v{VM}, v{DD+12}, v{DD+16}')
                a(f'v_mul_f32 v{ML}, v{VM}, v{VC}')
                for r in (8, 4, 2, 1):
                    a(f'v_max_f32_dpp v{VM}, v{VM}, v{VM} row_ror:{r}{FULL}')
                a(f'v_max_f32_dpp v{VM}, v{VM}, v{VM} row_bcast:15 row_mask:0xa bank_mask:0xf')
                a(f'v_max_f32_dpp v{VM}, v{VM}, v{VM} row_bcast:31 row_mask:0xc bank_mask:0xf')
                a(f'v_readlane_b32 s14, v{VM}, 63')
                a(f'v_mul_f32 v{VT0}, s14, v{VC}')
                a(f'v_sub_f32 v{F}, v{ML}, v{VT0}')
                a(f'v_exp_f32 v{F}, v{F}')
                for g2 in range(5):
                    a(f'v_fma_f32 v{E(g2)}, v{E(g2)}, v{VC}, -v{ML}')
                    a(f'v_exp_f32 v{E(g2)}, v{E(g2)}')
                a(f'v_add_f32 v{VT1}, v{E(0)}, v{E(1)}')
                a(f'v_mul_f32 v{VT2}, v{E(0)}, v{Q(0)}')
                a(f'v_fmac_f32 v{VT2}, v{E(1)}, v{Q(1)}')
                for g2 in range(2, 5):
                    a(f'v_add_f32 v{VT1}, v{VT1}, v{E(g2)}')
                    a(f'v_fmac_f32 v{VT2}, v{E(g2)}, v{Q(g2)}')
                a(f'v_mul_f32 v{VT1}, v{VT1}, v{F}')
                a(f'v_mul_f32 v{VT2}, v{VT2}, v{F}')
                for r in (8, 4, 2, 1):
                    a(f'v_add_f32_dpp v{VT1}, v{VT1}, v{VT1} row_ror:{r}{FULL}')
                    a(f'v_add_f32_dpp v{VT2}, v{VT2}, v{VT2} row_ror:{r}{FULL}')
                for b, mk in ((15, '0xa'), (31, '0xc')):
                    a(f'v_add_f32_dpp v{VT1}, v{VT1}, v{VT1} row_bcast:{b} row_mask:{mk} bank_mask:0xf')
                    a(f'v_add_f32_dpp v{VT2}, v{VT2}, v{VT2} row_bcast:{b} row_mask:{mk} bank_mask:0xf')
                a(f'v_readlane_b32 s15, v{VT1}, 63')
                a(f'v_readlane_b32 s34, v{VT2}, 63')
    u0, u1, M5 = YA + 2, YA + 3, ZA
    a(f'v_max_f32 v{M5}, s14, v{E(5)}')
    for r in (4, 2, 1):
        a(f'v_max_f32_dpp v{M5}, v{M5}, v{M5} row_ror:{r}{FULL}')
    a(f'v_mul_f32 v{u0}, v{M5}, v{VC}')
    a(f'v_fma_f32 v{E(5)}, v{E(5)}, v{VC}, -v{u0}')
    a(f'v_sub_f32 v{u1}, v{VT0}, v{u0}')
    a(f'v_exp_f32 v{E(5)}, v{E(5)}')
    a(f'v_exp_f32 v{u1}, v{u1}')
    a(f'v_mul_f32 v{Q(5)}, v{E(5)}, v{Q(5)}')
    for r in (4, 2, 1):
        a(f'v_add_f32_dpp v{E(5)}, v{E(5)}, v{E(5)} row_ror:{r}{FULL}')
        a(f'v_add_f32_dpp v{Q(5)}, v{Q(5)}, v{Q(5)} row_ror:{r}{FULL}')
    a(f'v_fmac_f32 v{E(5)}, s15, v{u1}')
    a(f'v_fmac_f32 v{Q(5)}, s34, v{u1}')
    a(f'v_rcp_f32 v{E(5)}, v{E(5)}')
    a(f'v_mul_f32 v{Q(5)}, v{Q(5)}, v{E(5)}')
    a(f'v_cvt_pk_bf16_f32 v{Q(5)}, v{Q(5)}, v{Q(5)}')
    a(f'buffer_store_short v{Q(5)}, v{VOFF}, s[36:39], 0 offen')
    for x, y in zip(mem, mem[1:]): edges.append((x, y, 0))
    nodes, byins = build_dag(seq, edges)
    BIG = 10 ** 6
    for n in reversed(nodes):
        inf = n.ins.info
        if n.ins.kind == 'mfma': n.prio = inf[-1]
        else:
            lat = lambda q: (1 + max(d for p, d in q.preds if p is n)) * optval('lw', 40) / 100.0
            n.prio = min([q.prio - lat(q) for q in n.succs], default=36 * NT + optval('end', 20))
        if inf and inf[0] == 'early': n.earliest = inf[1]
    pend_m = [n for n in nodes if n.ins.kind == 'mfma']
    pend_v = sorted([n for n in nodes if n.ins.kind != 'mfma'], key=lambda n: (n.prio, n.idx))
    pos = 0; t = 0; pipe = 0; nm = 0; last = None; out = []; nops = 0; tile_t = {}
    def ready(n):
        return n.earliest <= nm and all(p.pos is not None and pos - p.pos - 1 >= d for p, d in n.preds)
    def pick_m():
        win = pend_m[:80]
        rd = [n for n in win if ready(n)]
        if not rd: return None
        if last is not None and last[0] == 'M' and last[3] < 3:
            for n in rd:
                i = n.ins.info
                if i[0] == 'M' and i[1:3] == last[1:3]: return n
        sm = [n for n in rd if n.ins.info[0] == 'S']
        mm = [n for n in rd if n.ins.info[0] == 'M']
        if sm and not (last is not None and last[0] == 'S' and mm): return sm[0]
        return min(mm, key=lambda n: n.ins.info[1:4])
    def pick_v():
        for n in pend_v[:400]:
            if ready(n): return n
        return None
    FREE = 'nofree' not in OPTS
    while pend_m or pend_v:
        if FREE and out and out[-1].kind == 'mfma' and out[-1].op.startswith('v_mfma'):
            f = next((n for n in pend_v if n.ins.kind in ('ds', 'wait') and ready(n)), None)
            if f is not None:
                f.pos = pos; pend_v.remove(f); out.append(f.ins); pos += 1
                continue
        m = pick_m(); v = None
        if m is None or t < pipe: v = pick_v()
        if v is not None:
            v.pos = pos; pend_v.remove(v); out.append(v.ins); pos += 1; t += 8 if v.ins.op in ('v_exp_f32', 'v_rcp_f32') else 4
        elif m is not None:
            t = max(t, pipe)
            m.pos = pos; pend_m.remove(m); out.append(m.ins); pos += 1
            pipe = t + 16; t += optval('sc', 12) if m.ins.info[0] == 'S' else 8; nm += 1; last = m.ins.info
            tile_t.setdefault(last[1], t)
        else:
            out.append(Ins('s_nop 0')); pos += 1; t += 4; nops += 1
    if VERB:
        print('model cycles', t, 'nops', nops, 'tile starts', [tile_t[k] for k in sorted(tile_t)])
    for x in out:
        if x.kind == 'nop' and prog[-1].kind == 'nop' and int(prog[-1].ops[0]) < 15:
            prog[-1] = Ins(f's_nop {int(prog[-1].ops[0]) + 1}')
        else:
            prog.append(x)
            if x.text.startswith('s_waitcnt vmcnt(3)'): stamp(kind='a'); amp(3)
            inf = getattr(x, 'info', None)
            if inf and inf[0] == 'M' and inf[2:4] == (0, 0) and (inf[1] % 2 == 1 or inf[1] < 4): stamp(kind='t')

def tail():
    amp(4)
    if AMPA >= 0:
        e('s_memrealtime s[94:95]')
        e('s_waitcnt lgkmcnt(0)')
        e('s_sub_u32 s92, s92, s90')
        e(f's_mul_i32 s92, s92, {AMPK}')
        e('s_min_u32 s92, s92, 20000')
        e('L_spin:')
        e('s_memrealtime s[96:97]')
        e('s_waitcnt lgkmcnt(0)')
        e('s_sub_u32 s96, s96, s94')
        e('s_cmp_lt_u32 s96, s92')
        e('s_cbranch_scc1 L_spin')
    if TIMING:
        stamp(kind='a'); stamp(True)
        e('s_waitcnt lgkmcnt(0)')
        e('s_mov_b32 s58, 0x1000000'); e('s_mov_b32 s59, 0x00020000')
        e('s_mul_i32 s9, s4, 128')
        e(f'v_mov_b32 v{VT0}, 0x7ffffff0')
        e(f'v_writelane_b32 v{VT0}, s9, 0')
        for i in range(stampn[0]):
            e(f'v_mov_b32 v{VT1}, s{60+2*i}')
            e(f'buffer_store_dword v{VT1}, v{VT0}, s[56:59], 0 offen offset:{4*i}')
    e('L_end:')

vXA = prologue()
n_pro = len(prog)
main_phase(vXA)
tail()
prog, nins = fix_hazards(prog, VERB)
errs = check_waitcnt(prog)
assert not errs, '\n'.join(errs[:20])
if VERB: print('instructions', len(prog), 'inserted states', nins, 'stamps', stampn[0])

def render(prog):
    body = '\n'.join(x.text if x.kind == 'label' else '    ' + x.text for x in prog)
    return HDR + HEAD + body + FOOT

HEAD = f"""; @launch grid=(256,1,1) block=(256,1,1) lds={LDS_TOTAL}
.amdgcn_target "amdgcn-amd-amdhsa--gfx950"
.text
.globl standalone__factorization_afm__recsys_kernel
.p2align 8
.type standalone__factorization_afm__recsys_kernel,@function
standalone__factorization_afm__recsys_kernel:
"""
FOOT = """
s_endpgm
.section .rodata,"a"
.p2align 6
.amdhsa_kernel standalone__factorization_afm__recsys_kernel
  .amdhsa_next_free_vgpr 448
  .amdhsa_next_free_sgpr 102
  .amdhsa_accum_offset 256
  .amdhsa_group_segment_fixed_size 0
  .amdhsa_kernarg_size 88
  .amdhsa_user_sgpr_count 2
  .amdhsa_user_sgpr_kernarg_segment_ptr 1
  .amdhsa_system_sgpr_workgroup_id_x 1
  .amdhsa_float_denorm_mode_32 3
.end_amdhsa_kernel
"""
def sizes(ins):
    import subprocess, tempfile, re
    d = tempfile.mkdtemp()
    open(d + '/a.s', 'w').write('.amdgcn_target "amdgcn-amd-amdhsa--gfx950"\n.text\nL_spin:\n' + '\n'.join(x.text for x in ins) + '\n')
    subprocess.run(['clang', '-x', 'assembler', '-target', 'amdgcn-amd-amdhsa', '-mcpu=gfx950', '-c', d + '/a.s', '-o', d + '/a.o'], check=True)
    o = subprocess.run(['llvm-objdump', '-d', '--mcpu=gfx950', d + '/a.o'], capture_output=True, text=True).stdout
    r = [4 * len(m.group(1).split()) for m in re.finditer(r'// [0-9A-F]{12}: ([0-9A-F ]+)', o)]
    assert len(r) == len(ins)
    return r
if 'nohop' not in OPTS:
    i0 = next(i for i, x in enumerate(prog) if x.text == 'L_main:') + 1
    body = [x for x in prog[i0:] if x.kind != 'label']
    sz = dict(zip(map(id, body), sizes(body)))
    newp = prog[:i0]; off = 0; k = 0; prev = None
    for x in prog[i0:]:
        if k < 4 and off >= 4096 * (k + 1) + optval('so', 0) and prev is not None and prev.op.startswith('v_mfma') and x.kind == 'valu':
            newp += [Ins(f'L_stub{k}:'), Ins('s_cbranch_scc1 L_main')]; off += 4; k += 1
        newp.append(x); off += sz.get(id(x), 0); prev = x
    assert k == 4, k
    prog = newp
    if VERB: print('main bytes', off)
open(OUT, 'w').write(render(prog))
```

```python
import sys, os
sys.path.insert(0, os.path.dirname(os.path.abspath(__file__)))
from asmlib import Ins, fix_hazards, check_waitcnt, build_dag

OUT = sys.argv[1] if len(sys.argv) > 1 else 'standalone__factorization_afm__recsys.s'
OPTS = set(sys.argv[2].split(',')) if len(sys.argv) > 2 else set()
TIMING = 'time' in OPTS
VERB = 'v' in OPTS
def optval(name, default):
    for o in OPTS:
        if o.startswith(name + '='):
            return int(o.split('=')[1])
    return default

HDR = open('standalone__factorization_afm__recsys.s.ref').read().split('; Override launch')[0]

XF = list(range(16))
YF = [22, 23, 17, 23, 25, 18, 24, 19, 21, 20, 23, 25, 24, 22, 16, 21]
ZF = [23, 20, 20, 16, 22, 19, 21, 16, 17, 18, 22, 18, 25, 24, 17, 19]
def pat(p):
    if p == 'id': return list(range(16))
    k, v = p.split(':'); v = int(v)
    return [(n - v) % 16 for n in range(16)] if k == 'row_ror' else [v] * 16
TILES = [('X', 'X', f'row_ror:{r}') for r in range(1, 8)]
TILES += [('X', 'Y', f'row_newbcast:{YF.index(f)}') for f in range(16, 26)]
TILES += [('Y', 'Z', 'row_ror:13'), ('Y', 'Z', 'row_ror:5'), ('Y', 'Z', 'id')]
TILES += [('X', 'X', 'row_ror:8')]
TY, TZ = 7, 17
NT = len(TILES)
FS = {'X': XF, 'Y': YF, 'Z': ZF}
seen = set(); VALID = []
for a, b, p in TILES:
    v = []
    for n in range(16):
        i, j = FS[a][n], FS[b][pat(p)[n]]
        assert i != j
        key = (min(i, j), max(i, j))
        v.append(key not in seen); seen.add(key)
    VALID.append(v)
assert len(seen) == 325 and sum(map(sum, VALID)) == 325
NG = (NT + 3) // 4
def group_mask(G):
    m = 0
    for c in range(4):
        t = 4 * G + c
        for n in range(16):
            if t < NT and VALID[t][n]: m |= 1 << (16 * c + n)
    return m

WWAVE = 8448
VEC = 4 * WWAVE
ROWS = VEC + 2560; ROWB = 7 * 1088
VH, VZ0, VU, VP, VZ1, VB, VHN = VEC, VEC + 256, VEC + 512, VEC + 768, VEC + 1024, VEC + 1792, VEC + 2304
LDS_TOTAL = ROWS + 4 * ROWB

SIDX = 1
YA, ZA = 2, 6
VC, VOFF, VM, VT0, VT1, VT2 = 10, 11, 12, 13, 14, 15
RS = {'X': 16, 'Y': 48, 'Z': 80}
BIAS, BF, ACC, PK, PR, DD = 112, [144, 160], 176, 208, 224, 232
def vr(a, n=1): return f'v{a}' if n == 1 else f'v[{a}:{a+n-1}]'
def ar(a, n=1): return f'a{a}' if n == 1 else f'a[{a}:{a+n-1}]'
def WF(t, s): return ar(16 * t + 4 * s, 4)
def SF(c, k): return ar(128 + 16 * c + 4 * k, 4)
FULL = ' row_mask:0xf bank_mask:0xf'

prog = []
def e(s, tag=None):
    x = Ins(s, tag); prog.append(x); return x
stampn = [0]
AMPA, AMPB, AMPK = optval('ampa', -1), optval('ampb', -1), optval('ampk', 8)
def amp(pt):
    if pt == AMPA: e('s_memrealtime s[90:91]')
    if pt == AMPB: e('s_memrealtime s[92:93]')
def stamp(real=False, kind='p'):
    mode = 't' if 'tt' in OPTS else 'q' if 'tq' in OPTS else 'r' if 'tr' in OPTS else 'p'
    if TIMING and (real or kind == 'a' or mode in kind):
        e(f's_mem{"real" if real else ""}time s[{60+2*stampn[0]}:{61+2*stampn[0]}]'); stampn[0] += 1

POS = [16, 17, 18, 19, 20, 21, 23, 24, 25, 27]
def nib(F):
    P = [POS[f - 16] - 16 for f in F]
    lo = sum(P[n] << (4 * n) for n in range(8)); hi = sum(P[n + 8] << (4 * n) for n in range(8))
    return lo, hi

def prologue():
    T = iter(range(48, 80))
    tp = next(T); next(T)
    vN, vG, vK, vIO, vK4, vHB, vWD, vCS, vWW, vTR, vN2, vN3 = [next(T) for _ in range(12)]
    vAH, vAP, vAU, vAB, vAZ, t0, t1, t2, vPF = [next(T) for _ in range(9)]
    vCL = [VM, VT0, VT1, VT2]
    vIDX = list(range(PK, PK + 7))
    vXA = PK + 8
    vSH, vSP, vSB, vSB2 = PK + 12, PK + 13, PK + 14, PK + 15
    WRAW = RS['Z']; HB = BF[0]; UA = ACC

    M = []
    m = M.append
    m('s_lshl_b32 s8, s4, 1')
    m(f'v_mov_b32 v{VOFF}, 0x7ffffff0')
    m(f'v_writelane_b32 v{VOFF}, s8, 0')
    m(f'v_lshlrev_b32 v{vHB}, 4, v{vG}')
    m(f'v_lshrrev_b32 v{vN2}, 2, v{vN}')
    m(f'v_and_b32 v{vN3}, 3, v{vN}')
    m('s_movk_i32 s12, 1056')
    m(f'v_and_b32 v{t0}, 2, v{vN2}')
    m(f'v_lshl_add_u32 v{t0}, v{t0}, 1, v{vN3}')
    m(f'v_mad_u32_u24 v{t0}, v{t0}, s12, v{vHB}')
    m(f'v_and_b32 v{t1}, 1, v{vN2}')
    m(f'v_lshl_add_u32 v{t1}, v{t1}, 8, s9')
    m(f'v_add_u32 v{vWW}, v{t0}, v{t1}')
    m(f'v_and_b32 v{t0}, 1, v{vG}')
    m(f'v_lshl_add_u32 v{t0}, v{t0}, 2, v{vN2}')
    m(f'v_and_b32 v{t1}, 2, v{vG}')
    m(f'v_lshlrev_b32 v{t1}, 8, v{t1}')
    m(f'v_lshl_add_u32 v{t1}, v{vN3}, 3, v{t1}')
    m(f'v_mad_u32_u24 v{vTR}, v{t0}, s12, v{t1}')
    m(f'v_lshlrev_b32 v{vAB}, 3, v{vK}')
    m(f'v_and_b32 v{t2}, 1, v{vK}')
    m(f'v_lshlrev_b32 v{t0}, 2, v{t2}')
    m(f'v_bfe_u32 v{t1}, v{vK}, 1, 2')
    m(f'v_and_or_b32 v{t1}, v{vK}, 56, v{t1}')
    m(f'v_add_lshl_u32 v{vAP}, v{t0}, v{t1}, 2')
    m(f'v_bfe_u32 v{t1}, v{vK}, 3, 1')
    m(f'v_and_or_b32 v{t1}, v{vK}, 50, v{t1}')
    m(f'v_or_b32 v{t0}, v{t0}, v{t1}')
    m(f'v_and_b32 v{t1}, 4, v{vK}')
    m(f'v_lshl_or_b32 v{t0}, v{t1}, 1, v{t0}')
    m(f'v_lshlrev_b32 v{vAH}, 2, v{t0}')
    m(f'v_and_b32 v{t0}, 2, v{vN}')
    m('s_lshl_b32 s8, s3, 6')
    m(f'v_lshl_add_u32 v{t1}, v{t0}, 3, s8')
    m(f'v_lshl_add_u32 v{t1}, v{vN2}, 2, v{t1}')
    m(f'v_lshl_add_u32 v{vAU}, v{t2}, 1, v{t1}')
    m(f'v_lshlrev_b32 v{t1}, 4, v{t2}')
    m(f'v_lshl_or_b32 v{t1}, v{vG}, 5, v{t1}')
    m(f'v_lshl_or_b32 v{t1}, v{t0}, 7, v{t1}')
    m(f'v_mov_b32 v{vCL[0]}, 1024')
    m(f'v_mov_b32_dpp v{vCL[0]}, v{t1} quad_perm:[0,1,2,3] row_mask:0xf bank_mask:0x1')
    m('s_mov_b32 s13, 0xaaaa')
    m(f'v_mov_b32 v{SIDX}, 0x4444')
    m(f'v_mad_u32_u24 v{SIDX}, v{t2}, s13, v{SIDX}')
    for c in range(1, 4):
        m(f'v_mov_b32_dpp v{vCL[c]}, v{vCL[0]} row_ror:{4*c}{FULL}')
    m(f'v_mov_b64 {vr(DD,2)}, 0'); m(f'v_mov_b64 {vr(DD+2,2)}, 0')
    m(f'v_min_u32 v{t0}, 1, v{vG}')
    m(f'v_lshlrev_b32 v{t0}, 9, v{t0}')
    m(f'v_lshl_add_u32 v{vAZ}, v{vK}, 4, v{t0}')
    m(f'ds_write_b128 v{vAZ}, {vr(DD,4)} offset:{VZ0}')
    m(f'v_lshl_add_u32 v{t0}, v{vN}, 8, s5')
    m(f'v_lshl_add_u32 v{t0}, v{vN2}, 6, v{t0}')
    m(f'v_and_or_b32 v{vXA}, v{vCS}, 48, v{t0}')
    m(f'v_lshlrev_b32 v{t2}, 2, v{vN}')
    m(f's_add_u32 s8, s5, {4*1088}')
    for F, A in ((YF, YA), (ZF, ZA)):
        lo, hi = nib(F)
        m(f's_mov_b32 s12, {lo:#x}'); m(f's_mov_b32 s13, {hi:#x}')
        m(f'v_lshrrev_b64 {vr(tp,2)}, v{t2}, s[12:13]')
        m(f'v_and_b32 v{t0}, 15, v{tp}')
        m(f'v_lshl_add_u32 v{t1}, v{t0}, 8, s8')
        m(f'v_bfe_u32 v{t0}, v{tp}, 2, 2')
        m(f'v_lshl_add_u32 v{t1}, v{t0}, 6, v{t1}')
        m(f'v_xor_b32 v{t0}, v{tp}, v{vG}')
        m(f'v_and_b32 v{t0}, 3, v{t0}')
        m(f'v_lshl_add_u32 v{A}, v{t0}, 4, v{t1}')
    assert group_mask(0) == (1 << 64) - 1
    for G in range(1, NG):
        gm = group_mask(G)
        m(f'v_mov_b64 {vr(DD+4*G,2)}, 0'); m(f'v_mov_b64 {vr(DD+4*G+2,2)}, 0')
        if gm != (1 << 64) - 1 and G != NG - 1:
            for ln in range(64):
                if not gm >> ln & 1: m(f'v_writelane_b32 v{DD+4*G}, s35, {ln}')
    m(f'v_mov_b32 v{VC}, 0x3f38aa3b')
    if VERB: print('math instructions', len(M))
    def math(k):
        for _ in range(min(k, len(M))): e(M.pop(0))

    stamp(True); stamp(kind='a'); amp(0)
    e('s_load_dwordx16 s[16:31], s[0:1], 0')
    e('s_load_dwordx2 s[36:37], s[0:1], 64')
    if TIMING: e('s_load_dwordx2 s[56:57], s[0:1], 80')
    e('s_cmp_ge_u32 s2, 256')
    e('s_cbranch_scc1 L_end')
    e('s_getpc_b64 s[10:11]')
    e('L_pc:')
    e(f'v_lshlrev_b32 v{t0}, 7, v0')
    e(f'v_min_u32 v{t0}, L_end-L_pc, v{t0}')
    e(f'global_load_dword v{vPF}, v{t0}, s[10:11]')
    e(f'v_lshrrev_b32 v{t1}, 6, v0')
    e(f'v_and_b32 v{vN}, 15, v0')
    e(f'v_readfirstlane_b32 s3, v{t1}')
    e(f'v_bfe_u32 v{vG}, v0, 4, 2')
    e(f'v_and_b32 v{vK}, 63, v0')
    e('s_lshl_b32 s4, s2, 2')
    e('s_add_u32 s4, s4, s3')
    e('s_mul_i32 s6, s4, 104')
    e(f'v_mul_u32_u24 v{vIO}, 28, v{vG}')
    e(f'v_min_u32 v{vIO}, 76, v{vIO}')
    e(f'v_add_u32 v{vIO}, s6, v{vIO}')
    e(f's_mul_i32 s9, s3, {WWAVE}')
    e(f'v_and_b32 v{t0}, 2, v{vG}')
    e(f'v_add_u32 v{t0}, v{t0}, v{vG}')
    e(f'v_lshlrev_b32 v{t1}, 4, v{vN}')
    e(f'v_lshl_add_u32 v{vWD}, v{t0}, 10, v{t1}')
    e('s_bfe_u32 s8, s2, 0x30003')
    if 'norot' in OPTS: e('s_mov_b32 s8, 0')
    e('s_mul_i32 s44, s8, 1056')
    e('s_and_b32 s12, s8, 4'); e('s_add_u32 s12, s12, s8')
    e('s_lshl_b32 s7, s3, 5'); e('s_add_u32 s12, s12, s7')
    e('s_lshl_b32 s45, s12, 8')
    e('s_add_u32 m0, s44, s9')
    e(f'v_lshlrev_b32 v{vK4}, 2, v{vK}')
    e(f's_mul_i32 s5, s3, {ROWB}')
    e(f's_add_u32 s5, s5, {ROWS}')
    e('s_mov_b32 s42, 25600000'); e('s_mov_b32 s43, 0x00020000')
    e('s_mov_b32 s54, 32768'); e('s_mov_b32 s55, 0x00020000')
    e('s_mov_b32 s38, 2048'); e('s_mov_b32 s39, 0x00020000')
    e('s_mov_b32 s35, 0xff800000')
    e(f'v_xor_b32 v{t0}, v{vN}, v{vG}')
    e(f'v_lshlrev_b32 v{vCS}, 4, v{t0}')
    math(optval('m0', 17))
    stamp(kind='q')
    e('s_waitcnt lgkmcnt(0)')
    stamp(kind='pq'); amp(1)
    e(f'global_load_dwordx4 {vr(vIDX[0],4)}, v{vIO}, s[16:17] nt')
    e('s_mov_b32 s52, s24'); e('s_mov_b32 s53, s25')
    e(f'global_load_dwordx3 {vr(vIDX[4],3)}, v{vIO}, s[16:17] offset:16 nt')
    MI = optval('mi', 6)
    for i in range(8):
        if i:
            e(f's_xor_b32 s46, s44, {1056*i}'); e('s_add_u32 m0, s46, s9')
            e(f's_xor_b32 s46, s45, {256*((i&3) + 8*(i>>2))}')
        if i >= 3: math(MI)
        e(f'buffer_load_dwordx4 v{vWD}, s[52:55], s{46 if i else 45} offen lds')
        if i % 2 == 1: stamp(kind='q')
    e('s_mov_b32 s40, s18'); e('s_mov_b32 s41, s19')
    math(MI)
    e(f'global_load_dword v{vSH}, v{vK4}, s[28:29]')
    math(MI)
    e(f'global_load_dword v{vSP}, v{vK4}, s[30:31]')
    math(MI)
    e(f'global_load_dword v{vSB2}, v{vK4}, s[26:27]')
    VT = 0
    math(optval('m2', 0))
    def hop():
        if 'nohop' not in OPTS:
            for k in range(4):
                e(f's_cmp_eq_u32 s3, {k}')
                e(f's_cbranch_scc1 L_stub{k}')
        e('L_back:')
    if 'earlyhop' in OPTS: hop()
    e(f's_mov_b32 m0, s5')
    stamp(kind='pq')
    e(f's_waitcnt vmcnt({11 + VT})')
    amp(2)
    stamp(kind='pq')
    def rowdma(q):
        if q: e(f's_add_u32 m0, s5, {1088*q}')
        e(f'v_lshl_add_u32 v{vIDX[q]}, v{vIDX[q]}, 8, v{vCS}')
        if q == 5: e('s_mov_b32 exec_hi, 0xffff0000')
        e(f'buffer_load_dwordx4 v{vIDX[q]}, s[40:43], 0 offen nt lds')
        if q == 6: e('s_mov_b32 exec_hi, -1')
    for q in range(4): rowdma(q)
    stamp(kind='pq')
    math(1000)
    if 'earlyhop' not in OPTS: hop()
    e('s_branch L_main2')
    e('.p2align 12')
    e('L_main:')
    e('s_cbranch_scc1 L_back')
    e('L_main2:')
    stamp(kind='pq')
    rd = []
    for s in range(4):
        for t in range(8):
            for hh in range(2):
                rd.append(f'ds_read_b64_tr_b16 {ar(16*t+4*s+2*hh,2)}, v{vTR} offset:{WWAVE*s+256*hh+32*t}')
    def sfr(c, k): return f'ds_read_b128 {SF(c,k)}, v{vCL[c]} offset:{VEC + 128*(k&1) + 512*(k>>1)}'
    e(f's_waitcnt vmcnt({7 + VT})')
    amp(5)
    stamp(kind='pqr')
    for Tt in range(2):
        for s in range(4):
            e(f'ds_read_b128 {vr(WRAW+16*Tt+4*s,4)}, v{vWW} offset:{512*Tt+64*s}')
    if 'b1early' in OPTS: e('s_barrier')
    e(f's_waitcnt vmcnt({4 + VT})')
    stamp(kind='r')
    e(f'ds_write_b32 v{vK4}, v{vSH} offset:{VHN}')
    for s in range(4):
        e(f'ds_read_b128 {vr(HB+4*s,4)}, v{vHB} offset:{VHN+64*s}')
    e(f'v_lshlrev_b32 v{vSB}, 16, v{vSB2}')
    e(f'v_and_b32 v{vSB2}, 0xffff0000, v{vSB2}')
    e(f'ds_write_b64 v{vAB}, {vr(vSB,2)} offset:{VB}')
    e(f'ds_write_b32 v{vAH}, v{vSH} offset:{VH}')
    e(f'ds_write_b32 v{vAP}, v{vSP} offset:{VP}')
    for t in range(8):
        e(f'ds_read_b128 {vr(BIAS+4*t,4)}, v{vHB} offset:{VB+64*t}')
    stamp(kind='r')
    if 'b1early' not in OPTS: e('s_barrier')
    stamp(kind='pr')
    e('s_waitcnt lgkmcnt(11)')
    for Tt in range(2):
        for s in range(4):
            c = '0' if s == 0 else vr(UA+4*Tt, 4)
            e(f'v_mfma_f32_16x16x32_bf16 {vr(UA+4*Tt,4)}, {vr(HB+4*s,4)}, {vr(WRAW+16*Tt+4*s,4)}, {c}')
            e(rd[2*(4*Tt + s)]); e(rd[1 + 2*(4*Tt + s)])
    stamp(kind='r')
    for i in range(16, 23): e(rd[i])
    e(f'v_cvt_pk_bf16_f32 v{t2}, v{UA}, v{UA+4}')
    e(f'ds_write_b16 v{vAU}, v{t2} offset:{VU}')
    e(f'ds_write_b16_d16_hi v{vAU}, v{t2} offset:{VU+32}')
    for x in rd[23:40]: e(x)
    e('s_waitcnt lgkmcnt(15)')
    e('s_barrier')
    e(sfr(0, 2)); e(sfr(0, 3))
    for x in rd[40:]: e(x)
    stamp(kind='r')
    for q in range(4, 7): rowdma(q)
    e('s_cmp_eq_u32 s3, 4')
    global DEFER
    DEFER = [sfr(0, 0), sfr(0, 1)] + [sfr(c, k) for c in range(1, 4) for k in (2, 3, 0, 1)]
    stamp(kind='pr'); amp(6)
    return vXA

def main_phase(vXA):
    seq = []; edges = []; mem = []
    def a(s, info=None):
        x = Ins(s); x.info = info; seq.append(x); return x
    def load_set(S, addrs, vmw, earliest, lat):
        base = RS[S]
        w = a(f's_waitcnt vmcnt({vmw})', ('early', earliest)); mem.append(w)
        rd = [a(f'ds_read_b128 {vr(base+16+4*s,4)}, v{addrs} offset:{64*s}') for s in range(4)]
        mem.extend(rd)
        nd = 0
        if lat:
            wl = a('s_waitcnt lgkmcnt(0)'); mem.append(wl); edges.append((rd[3], wl, lat))
        for s in range(4):
            if not lat:
                wl = a(f's_waitcnt lgkmcnt({3-s+nd})'); mem.append(wl)
            for i in range(4 * s, 4 * s + 4):
                x = a(f'v_lshlrev_b32 v{base+2*i}, 16, v{base+16+i}'); edges.append((wl, x, 0))
                x = a(f'v_and_b32 v{base+2*i+1}, 0xffff0000, v{base+16+i}'); edges.append((wl, x, 0))
    prn = [0]
    def gen(t):
        P, Dp, p = TILES[t]
        for s in range(4):
            for i in range(4):
                q = PR + 2 * (prn[0] % 4); prn[0] += 1
                for h in range(2):
                    r = 8 * s + 2 * i + h
                    if p == 'id': a(f'v_mul_f32 v{q+h}, v{RS[Dp]+r}, v{RS[P]+r}')
                    else: a(f'v_mul_f32_dpp v{q+h}, v{RS[Dp]+r}, v{RS[P]+r} {p}{FULL}')
                a(f'v_cvt_pk_bf16_f32 v{BF[t&1]+4*s+i}, v{q}, v{q+1}')
    load_set('X', vXA, 3, 0, 0)
    wdef = {}
    sp = optval('sp', 5)
    for i in range(0, len(DEFER), 2):
        d0 = a(DEFER[i], ('early', 20 + sp * i)); d1 = a(DEFER[i + 1], ('early', 20 + sp * (i + 1)))
        w = a('s_waitcnt lgkmcnt(0)'); edges.append((d1, w, 10))
        mem.extend([d0, d1, w])
        wdef[i // 2] = w
    for t in range(NT):
        if t == TY: load_set('Y', YA, 0, optval('ye', 170), 24)
        if t == TZ: load_set('Z', ZA, 0, optval('ze', 300), 24)
        gen(t)
        G, c = t // 4, t % 4
        d = vr(DD + 4 * G, 4)
        for k in range(2):
            x = a(f'v_smfmac_f32_16x16x64_bf16 {d}, {SF(c,2+k)}, {vr(BF[t&1]+8*k,8)}, v{SIDX}', ('S', t, 36 * t + 18 + 9 * k))
            if 1 <= t <= 3: edges.append((wdef[2 * t - 1], x, 0))
        for m in range(8):
            acc = vr(ACC + 4 * m, 4)
            strict = t >= optval('mm', 1)
            for s0 in range(4):
                s = 3 - s0 if (strict and m % 2 and 'nosnake' not in OPTS) else s0
                cc = vr(BIAS + 4 * m, 4) if s0 == 0 else acc
                x = a(f'v_mfma_f32_16x16x32_bf16 {acc}, {WF(m,s)}, {vr(BF[t&1]+4*s,4)}, {cc}',
                      ('M', t, m, s0, 36 * t + (4.5 * m + s0 if strict else 9 * s0 + m)))
                if strict and s0 == 0 and m > 0: edges.append((prevm, x, 0))
                prevm = x
            for h in range(2):
                a(f'v_cvt_pk_bf16_f32 v{PK+2*m+h}, |v{ACC+4*m+2*h}|, |v{ACC+4*m+2*h+1}|')
            if m % 4 == 3:
                k = m // 4
                x = a(f'v_smfmac_f32_16x16x64_bf16 {d}, {SF(c,k)}, {vr(PK+8*k,8)}, v{SIDX}', ('S', t, 36 * t + 40 + 4 * k))
                if t <= 3: edges.append((wdef[2 * t], x, 0))
        if c == 3 or t == NT - 1:
            a(f'v_add_f32 v{DD+4*G}, v{DD+4*G}, v{DD+4*G+1}')
            a(f'v_add_f32 v{DD+4*G+2}, v{DD+4*G+2}, v{DD+4*G+3}')
            if G == 2: a(f'v_max3_f32 v{VM}, v{DD}, v{DD+4}, v{DD+8}')
            if G == 4:
                E = lambda G: DD + 4 * G
                Q = lambda G: DD + 4 * G + 2
                ML, F = YA, YA + 1
                a(f'v_max3_f32 v{VM}, v{VM}, v{DD+12}, v{DD+16}')
                a(f'v_mul_f32 v{ML}, v{VM}, v{VC}')
                for r in (8, 4, 2, 1):
                    a(f'v_max_f32_dpp v{VM}, v{VM}, v{VM} row_ror:{r}{FULL}')
                a(f'v_max_f32_dpp v{VM}, v{VM}, v{VM} row_bcast:15 row_mask:0xa bank_mask:0xf')
                a(f'v_max_f32_dpp v{VM}, v{VM}, v{VM} row_bcast:31 row_mask:0xc bank_mask:0xf')
                a(f'v_readlane_b32 s14, v{VM}, 63')
                a(f'v_mul_f32 v{VT0}, s14, v{VC}')
                a(f'v_sub_f32 v{F}, v{ML}, v{VT0}')
                a(f'v_exp_f32 v{F}, v{F}')
                for g2 in range(5):
                    a(f'v_fma_f32 v{E(g2)}, v{E(g2)}, v{VC}, -v{ML}')
                    a(f'v_exp_f32 v{E(g2)}, v{E(g2)}')
                a(f'v_add_f32 v{VT1}, v{E(0)}, v{E(1)}')
                a(f'v_mul_f32 v{VT2}, v{E(0)}, v{Q(0)}')
                a(f'v_fmac_f32 v{VT2}, v{E(1)}, v{Q(1)}')
                for g2 in range(2, 5):
                    a(f'v_add_f32 v{VT1}, v{VT1}, v{E(g2)}')
                    a(f'v_fmac_f32 v{VT2}, v{E(g2)}, v{Q(g2)}')
                a(f'v_mul_f32 v{VT1}, v{VT1}, v{F}')
                a(f'v_mul_f32 v{VT2}, v{VT2}, v{F}')
                for r in (8, 4, 2, 1):
                    a(f'v_add_f32_dpp v{VT1}, v{VT1}, v{VT1} row_ror:{r}{FULL}')
                    a(f'v_add_f32_dpp v{VT2}, v{VT2}, v{VT2} row_ror:{r}{FULL}')
                for b, mk in ((15, '0xa'), (31, '0xc')):
                    a(f'v_add_f32_dpp v{VT1}, v{VT1}, v{VT1} row_bcast:{b} row_mask:{mk} bank_mask:0xf')
                    a(f'v_add_f32_dpp v{VT2}, v{VT2}, v{VT2} row_bcast:{b} row_mask:{mk} bank_mask:0xf')
                a(f'v_readlane_b32 s15, v{VT1}, 63')
                a(f'v_readlane_b32 s34, v{VT2}, 63')
    u0, u1, M5 = YA + 2, YA + 3, ZA
    a(f'v_max_f32 v{M5}, s14, v{E(5)}')
    for r in (4, 2, 1):
        a(f'v_max_f32_dpp v{M5}, v{M5}, v{M5} row_ror:{r}{FULL}')
    a(f'v_mul_f32 v{u0}, v{M5}, v{VC}')
    a(f'v_fma_f32 v{E(5)}, v{E(5)}, v{VC}, -v{u0}')
    a(f'v_sub_f32 v{u1}, v{VT0}, v{u0}')
    a(f'v_exp_f32 v{E(5)}, v{E(5)}')
    a(f'v_exp_f32 v{u1}, v{u1}')
    a(f'v_mul_f32 v{Q(5)}, v{E(5)}, v{Q(5)}')
    for r in (4, 2, 1):
        a(f'v_add_f32_dpp v{E(5)}, v{E(5)}, v{E(5)} row_ror:{r}{FULL}')
        a(f'v_add_f32_dpp v{Q(5)}, v{Q(5)}, v{Q(5)} row_ror:{r}{FULL}')
    a(f'v_fmac_f32 v{E(5)}, s15, v{u1}')
    a(f'v_fmac_f32 v{Q(5)}, s34, v{u1}')
    a(f'v_rcp_f32 v{E(5)}, v{E(5)}')
    a(f'v_mul_f32 v{Q(5)}, v{Q(5)}, v{E(5)}')
    a(f'v_cvt_pk_bf16_f32 v{Q(5)}, v{Q(5)}, v{Q(5)}')
    a(f'buffer_store_short v{Q(5)}, v{VOFF}, s[36:39], 0 offen')
    for x, y in zip(mem, mem[1:]): edges.append((x, y, 0))
    nodes, byins = build_dag(seq, edges)
    BIG = 10 ** 6
    for n in reversed(nodes):
        inf = n.ins.info
        if n.ins.kind == 'mfma': n.prio = inf[-1]
        else:
            lat = lambda q: (1 + max(d for p, d in q.preds if p is n)) * optval('lw', 40) / 100.0
            n.prio = min([q.prio - lat(q) for q in n.succs], default=36 * NT + optval('end', 20))
        if inf and inf[0] == 'early': n.earliest = inf[1]
    pend_m = [n for n in nodes if n.ins.kind == 'mfma']
    pend_v = sorted([n for n in nodes if n.ins.kind != 'mfma'], key=lambda n: (n.prio, n.idx))
    pos = 0; t = 0; pipe = 0; nm = 0; last = None; out = []; nops = 0; tile_t = {}
    def ready(n):
        return n.earliest <= nm and all(p.pos is not None and pos - p.pos - 1 >= d for p, d in n.preds)
    def pick_m():
        win = pend_m[:80]
        rd = [n for n in win if ready(n)]
        if not rd: return None
        if last is not None and last[0] == 'M' and last[3] < 3:
            for n in rd:
                i = n.ins.info
                if i[0] == 'M' and i[1:3] == last[1:3]: return n
        sm = [n for n in rd if n.ins.info[0] == 'S']
        mm = [n for n in rd if n.ins.info[0] == 'M']
        if sm and not (last is not None and last[0] == 'S' and mm): return sm[0]
        return min(mm, key=lambda n: n.ins.info[1:4])
    def pick_v():
        for n in pend_v[:400]:
            if ready(n): return n
        return None
    FREE = 'nofree' not in OPTS
    while pend_m or pend_v:
        if FREE and out and out[-1].kind == 'mfma' and out[-1].op.startswith('v_mfma'):
            f = next((n for n in pend_v if n.ins.kind in ('ds', 'wait') and ready(n)), None)
            if f is not None:
                f.pos = pos; pend_v.remove(f); out.append(f.ins); pos += 1
                continue
        m = pick_m(); v = None
        if m is None or t < pipe: v = pick_v()
        if v is not None:
            v.pos = pos; pend_v.remove(v); out.append(v.ins); pos += 1; t += 8 if v.ins.op in ('v_exp_f32', 'v_rcp_f32') else 4
        elif m is not None:
            t = max(t, pipe)
            m.pos = pos; pend_m.remove(m); out.append(m.ins); pos += 1
            pipe = t + 16; t += optval('sc', 12) if m.ins.info[0] == 'S' else 8; nm += 1; last = m.ins.info
            tile_t.setdefault(last[1], t)
        else:
            out.append(Ins('s_nop 0')); pos += 1; t += 4; nops += 1
    if VERB:
        print('model cycles', t, 'nops', nops, 'tile starts', [tile_t[k] for k in sorted(tile_t)])
    for x in out:
        if x.kind == 'nop' and prog[-1].kind == 'nop' and int(prog[-1].ops[0]) < 15:
            prog[-1] = Ins(f's_nop {int(prog[-1].ops[0]) + 1}')
        else:
            prog.append(x)
            if x.text.startswith('s_waitcnt vmcnt(3)'): stamp(kind='a'); amp(3)
            inf = getattr(x, 'info', None)
            if inf and inf[0] == 'M' and inf[2:4] == (0, 0) and (inf[1] % 2 == 1 or inf[1] < 4): stamp(kind='t')

def tail():
    amp(4)
    if AMPA >= 0:
        e('s_memrealtime s[94:95]')
        e('s_waitcnt lgkmcnt(0)')
        e('s_sub_u32 s92, s92, s90')
        e(f's_mul_i32 s92, s92, {AMPK}')
        e('s_min_u32 s92, s92, 20000')
        e('L_spin:')
        e('s_memrealtime s[96:97]')
        e('s_waitcnt lgkmcnt(0)')
        e('s_sub_u32 s96, s96, s94')
        e('s_cmp_lt_u32 s96, s92')
        e('s_cbranch_scc1 L_spin')
    if TIMING:
        stamp(kind='a'); stamp(True)
        e('s_waitcnt lgkmcnt(0)')
        e('s_mov_b32 s58, 0x1000000'); e('s_mov_b32 s59, 0x00020000')
        e('s_mul_i32 s9, s4, 128')
        e(f'v_mov_b32 v{VT0}, 0x7ffffff0')
        e(f'v_writelane_b32 v{VT0}, s9, 0')
        for i in range(stampn[0]):
            e(f'v_mov_b32 v{VT1}, s{60+2*i}')
            e(f'buffer_store_dword v{VT1}, v{VT0}, s[56:59], 0 offen offset:{4*i}')
    e('L_end:')

vXA = prologue()
n_pro = len(prog)
main_phase(vXA)
tail()
prog, nins = fix_hazards(prog, VERB)
errs = check_waitcnt(prog)
assert not errs, '\n'.join(errs[:20])
if VERB: print('instructions', len(prog), 'inserted states', nins, 'stamps', stampn[0])

def render(prog):
    body = '\n'.join(x.text if x.kind == 'label' else '    ' + x.text for x in prog)
    return HDR + HEAD + body + FOOT

HEAD = f"""; @launch grid=(256,1,1) block=(256,1,1) lds={LDS_TOTAL}
.amdgcn_target "amdgcn-amd-amdhsa--gfx950"
.text
.globl standalone__factorization_afm__recsys_kernel
.p2align 8
.type standalone__factorization_afm__recsys_kernel,@function
standalone__factorization_afm__recsys_kernel:
"""
FOOT = """
s_endpgm
.section .rodata,"a"
.p2align 6
.amdhsa_kernel standalone__factorization_afm__recsys_kernel
  .amdhsa_next_free_vgpr 448
  .amdhsa_next_free_sgpr 102
  .amdhsa_accum_offset 256
  .amdhsa_group_segment_fixed_size 0
  .amdhsa_kernarg_size 88
  .amdhsa_user_sgpr_count 2
  .amdhsa_user_sgpr_kernarg_segment_ptr 1
  .amdhsa_system_sgpr_workgroup_id_x 1
  .amdhsa_float_denorm_mode_32 3
.end_amdhsa_kernel
"""
def sizes(ins):
    import subprocess, tempfile, re
    d = tempfile.mkdtemp()
    open(d + '/a.s', 'w').write('.amdgcn_target "amdgcn-amd-amdhsa--gfx950"\n.text\nL_spin:\nL_back:\n' + '\n'.join(x.text for x in ins) + '\n')
    subprocess.run(['clang', '-x', 'assembler', '-target', 'amdgcn-amd-amdhsa', '-mcpu=gfx950', '-c', d + '/a.s', '-o', d + '/a.o'], check=True)
    o = subprocess.run(['llvm-objdump', '-d', '--mcpu=gfx950', d + '/a.o'], capture_output=True, text=True).stdout
    r = [4 * len(m.group(1).split()) for m in re.finditer(r'// [0-9A-F]{12}: ([0-9A-F ]+)', o)]
    assert len(r) == len(ins)
    return r
if 'nohop' not in OPTS:
    i0 = next(i for i, x in enumerate(prog) if x.text == 'L_main:') + 1
    body = [x for x in prog[i0:] if x.kind != 'label']
    sz = dict(zip(map(id, body), sizes(body)))
    newp = prog[:i0]; off = 0; k = 0; prev = None
    for x in prog[i0:]:
        if k < 4 and off >= 4096 * (k + 1) + optval('so', 0) and prev is not None and prev.op.startswith('v_mfma') and x.kind == 'valu':
            newp += [Ins(f'L_stub{k}:'), Ins('s_cbranch_scc1 ' + ('L_main2' if 'earlyhop' not in OPTS else 'L_main' if k == 0 else 'L_back'))]; off += 4; k += 1
        newp.append(x); off += sz.get(id(x), 0); prev = x
    assert k == 4, k
    prog = newp
    if VERB: print('main bytes', off)
open(OUT, 'w').write(render(prog))
```

```python
import sys, os
sys.path.insert(0, os.path.dirname(os.path.abspath(__file__)))
from asmlib import Ins, fix_hazards, check_waitcnt, build_dag

OUT = sys.argv[1] if len(sys.argv) > 1 else 'standalone__factorization_afm__recsys.s'
OPTS = set(sys.argv[2].split(',')) if len(sys.argv) > 2 else set()
TIMING = 'time' in OPTS
VERB = 'v' in OPTS
def optval(name, default):
    for o in OPTS:
        if o.startswith(name + '='):
            return int(o.split('=')[1])
    return default

HDR = open('standalone__factorization_afm__recsys.s.ref').read().split('; Override launch')[0]

XF = list(range(16))
YF = [22, 23, 17, 23, 25, 18, 24, 19, 21, 20, 23, 25, 24, 22, 16, 21]
ZF = [23, 20, 20, 16, 22, 19, 21, 16, 17, 18, 22, 18, 25, 24, 17, 19]
def pat(p):
    if p == 'id': return list(range(16))
    k, v = p.split(':'); v = int(v)
    return [(n - v) % 16 for n in range(16)] if k == 'row_ror' else [v] * 16
TILES = [('X', 'X', f'row_ror:{r}') for r in range(1, 8)]
TILES += [('X', 'Y', f'row_newbcast:{YF.index(f)}') for f in range(16, 26)]
TILES += [('Y', 'Z', 'row_ror:13'), ('Y', 'Z', 'row_ror:5'), ('Y', 'Z', 'id')]
TILES += [('X', 'X', 'row_ror:8')]
TY, TZ = 7, 17
NT = len(TILES)
FS = {'X': XF, 'Y': YF, 'Z': ZF}
seen = set(); VALID = []
for a, b, p in TILES:
    v = []
    for n in range(16):
        i, j = FS[a][n], FS[b][pat(p)[n]]
        assert i != j
        key = (min(i, j), max(i, j))
        v.append(key not in seen); seen.add(key)
    VALID.append(v)
assert len(seen) == 325 and sum(map(sum, VALID)) == 325
NG = (NT + 3) // 4
def group_mask(G):
    m = 0
    for c in range(4):
        t = 4 * G + c
        for n in range(16):
            if t < NT and VALID[t][n]: m |= 1 << (16 * c + n)
    return m

WWAVE = 8448
VEC = 4 * WWAVE
ROWS = VEC + 2560; ROWB = 7 * 1088
VH, VZ0, VU, VP, VZ1, VB, VHN = VEC, VEC + 256, VEC + 512, VEC + 768, VEC + 1024, VEC + 1792, VEC + 2304
LDS_TOTAL = ROWS + 4 * ROWB

SIDX = 1
YA, ZA = 2, 6
VC, VOFF, VM, VT0, VT1, VT2 = 10, 11, 12, 13, 14, 15
RS = {'X': 16, 'Y': 48, 'Z': 80}
BIAS, BF, ACC, PK, PR, DD = 112, [144, 160], 176, 208, 224, 232
def vr(a, n=1): return f'v{a}' if n == 1 else f'v[{a}:{a+n-1}]'
def ar(a, n=1): return f'a{a}' if n == 1 else f'a[{a}:{a+n-1}]'
def WF(t, s): return ar(16 * t + 4 * s, 4)
def SF(c, k): return ar(128 + 16 * c + 4 * k, 4)
FULL = ' row_mask:0xf bank_mask:0xf'

prog = []
def e(s, tag=None):
    x = Ins(s, tag); prog.append(x); return x
stampn = [0]
AMPA, AMPB, AMPK = optval('ampa', -1), optval('ampb', -1), optval('ampk', 8)
def amp(pt):
    if pt == AMPA: e('s_memrealtime s[90:91]')
    if pt == AMPB: e('s_memrealtime s[92:93]')
def stamp(real=False, kind='p'):
    mode = 't' if 'tt' in OPTS else 'q' if 'tq' in OPTS else 'r' if 'tr' in OPTS else 'p'
    if TIMING and (real or kind == 'a' or mode in kind):
        e(f's_mem{"real" if real else ""}time s[{76+2*stampn[0]}:{77+2*stampn[0]}]'); stampn[0] += 1; assert stampn[0] <= 13

POS = [16, 17, 18, 20, 21, 22, 24, 25, 26, 27]
def nib(F):
    P = [POS[f - 16] - 16 for f in F]
    lo = sum(P[n] << (4 * n) for n in range(8)); hi = sum(P[n + 8] << (4 * n) for n in range(8))
    return lo, hi

def prologue():
    T = iter(range(48, 80))
    tp = next(T); next(T)
    vN, vG, vK, vIO, vK4, vHB, vWD, vCS, vWW, vTR, vN2, vN3, vIOY, vCSX = [next(T) for _ in range(14)]
    vAH, vAP, vAU, vAB, vAZ, t0, t1, t2, vPF = [next(T) for _ in range(9)]
    vCL = [VM, VT0, VT1, VT2]
    vIDX = list(range(PK, PK + 7))
    vXA = PK + 8
    vSH, vSP, vSB, vSB2 = PK + 12, PK + 13, PK + 14, PK + 15
    WRAW = RS['Z']; HB = BF[0]; UA = ACC

    M = []
    m = M.append
    m('s_lshl_b32 s8, s4, 1')
    m(f'v_mov_b32 v{VOFF}, 0x7ffffff0')
    m(f'v_writelane_b32 v{VOFF}, s8, 0')
    m(f'v_lshlrev_b32 v{vHB}, 4, v{vG}')
    m(f'v_lshrrev_b32 v{vN2}, 2, v{vN}')
    m(f'v_and_b32 v{vN3}, 3, v{vN}')
    m('s_movk_i32 s12, 1056')
    m(f'v_and_b32 v{t0}, 2, v{vN2}')
    m(f'v_lshl_add_u32 v{t0}, v{t0}, 1, v{vN3}')
    m(f'v_mad_u32_u24 v{t0}, v{t0}, s12, v{vHB}')
    m(f'v_and_b32 v{t1}, 1, v{vN2}')
    m(f'v_lshl_add_u32 v{t1}, v{t1}, 8, s9')
    m(f'v_add_u32 v{vWW}, v{t0}, v{t1}')
    m(f'v_and_b32 v{t0}, 1, v{vG}')
    m(f'v_lshl_add_u32 v{t0}, v{t0}, 2, v{vN2}')
    m(f'v_and_b32 v{t1}, 2, v{vG}')
    m(f'v_lshlrev_b32 v{t1}, 8, v{t1}')
    m(f'v_lshl_add_u32 v{t1}, v{vN3}, 3, v{t1}')
    m(f'v_mad_u32_u24 v{vTR}, v{t0}, s12, v{t1}')
    m(f'v_lshlrev_b32 v{vAB}, 3, v{vK}')
    m(f'v_and_b32 v{t2}, 1, v{vK}')
    m(f'v_lshlrev_b32 v{t0}, 2, v{t2}')
    m(f'v_bfe_u32 v{t1}, v{vK}, 1, 2')
    m(f'v_and_or_b32 v{t1}, v{vK}, 56, v{t1}')
    m(f'v_add_lshl_u32 v{vAP}, v{t0}, v{t1}, 2')
    m(f'v_bfe_u32 v{t1}, v{vK}, 3, 1')
    m(f'v_and_or_b32 v{t1}, v{vK}, 50, v{t1}')
    m(f'v_or_b32 v{t0}, v{t0}, v{t1}')
    m(f'v_and_b32 v{t1}, 4, v{vK}')
    m(f'v_lshl_or_b32 v{t0}, v{t1}, 1, v{t0}')
    m(f'v_lshlrev_b32 v{vAH}, 2, v{t0}')
    m(f'v_and_b32 v{t0}, 2, v{vN}')
    m('s_lshl_b32 s8, s3, 6')
    m(f'v_lshl_add_u32 v{t1}, v{t0}, 3, s8')
    m(f'v_lshl_add_u32 v{t1}, v{vN2}, 2, v{t1}')
    m(f'v_lshl_add_u32 v{vAU}, v{t2}, 1, v{t1}')
    m(f'v_lshlrev_b32 v{t1}, 4, v{t2}')
    m(f'v_lshl_or_b32 v{t1}, v{vG}, 5, v{t1}')
    m(f'v_lshl_or_b32 v{t1}, v{t0}, 7, v{t1}')
    m(f'v_mov_b32 v{vCL[0]}, 1024')
    m(f'v_mov_b32_dpp v{vCL[0]}, v{t1} quad_perm:[0,1,2,3] row_mask:0xf bank_mask:0x1')
    m('s_mov_b32 s13, 0xaaaa')
    m(f'v_mov_b32 v{SIDX}, 0x4444')
    m(f'v_mad_u32_u24 v{SIDX}, v{t2}, s13, v{SIDX}')
    for c in range(1, 4):
        m(f'v_mov_b32_dpp v{vCL[c]}, v{vCL[0]} row_ror:{4*c}{FULL}')
    m(f'v_mov_b64 {vr(DD,2)}, 0'); m(f'v_mov_b64 {vr(DD+2,2)}, 0')
    m(f'v_min_u32 v{t0}, 1, v{vG}')
    m(f'v_lshlrev_b32 v{t0}, 9, v{t0}')
    m(f'v_lshl_add_u32 v{vAZ}, v{vK}, 4, v{t0}')
    m(f'ds_write_b128 v{vAZ}, {vr(DD,4)} offset:{VZ0}')
    m(f'v_lshl_add_u32 v{t0}, v{vN}, 7, s5')
    m(f'v_and_b32 v{t1}, 8, v{vN}')
    m(f'v_lshl_add_u32 v{t0}, v{t1}, 3, v{t0}')
    m(f'v_lshlrev_b32 v{t1}, 3, v{vN}')
    m(f'v_xor_b32 v{t1}, v{t1}, v{vHB}')
    m(f'v_and_or_b32 v{vXA}, v{t1}, 48, v{t0}')
    m(f'v_lshlrev_b32 v{t2}, 2, v{vN}')
    m(f's_add_u32 s8, s5, {4*1088}')
    for F, A in ((YF, YA), (ZF, ZA)):
        lo, hi = nib(F)
        m(f's_mov_b32 s12, {lo:#x}'); m(f's_mov_b32 s13, {hi:#x}')
        m(f'v_lshrrev_b64 {vr(tp,2)}, v{t2}, s[12:13]')
        m(f'v_and_b32 v{t0}, 15, v{tp}')
        m(f'v_lshl_add_u32 v{t1}, v{t0}, 8, s8')
        m(f'v_bfe_u32 v{t0}, v{tp}, 2, 2')
        m(f'v_lshl_add_u32 v{t1}, v{t0}, 6, v{t1}')
        m(f'v_xor_b32 v{t0}, v{tp}, v{vG}')
        m(f'v_and_b32 v{t0}, 3, v{t0}')
        m(f'v_lshl_add_u32 v{A}, v{t0}, 4, v{t1}')
    assert group_mask(0) == (1 << 64) - 1
    for G in range(1, NG):
        gm = group_mask(G)
        m(f'v_mov_b64 {vr(DD+4*G,2)}, 0'); m(f'v_mov_b64 {vr(DD+4*G+2,2)}, 0')
        if gm != (1 << 64) - 1 and G != NG - 1:
            for ln in range(64):
                if not gm >> ln & 1: m(f'v_writelane_b32 v{DD+4*G}, s35, {ln}')
    m(f'v_mov_b32 v{VC}, 0x3f38aa3b')
    if VERB: print('math instructions', len(M))
    def math(k):
        for _ in range(min(k, len(M))): e(M.pop(0))

    stamp(True); stamp(kind='a'); amp(0)
    e('s_load_dwordx16 s[16:31], s[0:1], 0')
    e('s_load_dwordx2 s[36:37], s[0:1], 64')
    if TIMING: e('s_load_dwordx2 s[56:57], s[0:1], 80')
    e('s_cmp_ge_u32 s2, 256')
    e('s_cbranch_scc1 L_end')
    e('s_getpc_b64 s[10:11]')
    e('L_pc:')
    PF = optval('pf', 2)
    if PF == 6:
        e(f'v_lshlrev_b32 v{t0}, 7, v0')
    else:
        e(f's_lshl_b32 s8, s2, {PF + 6}')
        e(f'v_lshrrev_b32 v{t1}, 6, v0')
        e(f'v_and_b32 v{t0}, {(1 << PF) - 1}, v0')
        e(f'v_lshl_or_b32 v{t0}, v{t1}, {PF}, v{t0}')
        e(f's_and_b32 s8, s8, {0x7fff & ~((1 << (PF + 9)) - 1):#x}')
        e(f'v_lshl_or_b32 v{t0}, v{t0}, 7, s8')
    e(f'v_min_u32 v{t0}, L_end-L_pc, v{t0}')
    e(f'global_load_dword v{vPF}, v{t0}, s[10:11]' + (' nt' if 'pfnt' in OPTS else ''))
    e(f'v_lshrrev_b32 v{t1}, 6, v0')
    e(f'v_and_b32 v{vN}, 15, v0')
    e(f'v_readfirstlane_b32 s3, v{t1}')
    e(f'v_bfe_u32 v{vG}, v0, 4, 2')
    e(f'v_and_b32 v{vK}, 63, v0')
    if 'noremap' in OPTS:
        e('s_lshl_b32 s4, s2, 2')
    else:
        e('s_and_b32 s4, s2, 7'); e('s_lshl_b32 s4, s4, 7')
        e('s_lshr_b32 s6, s2, 3'); e('s_lshl_b32 s6, s6, 2')
        e('s_add_u32 s4, s4, s6')
    e('s_add_u32 s4, s4, s3')
    e('s_mul_i32 s6, s4, 104')
    e(f'v_and_b32 v{vIO}, 0x38, v0')
    e(f'v_add_u32 v{vIO}, s6, v{vIO}')
    e(f'v_mul_u32_u24 v{vIOY}, 12, v{vG}')
    e(f'v_min_u32 v{vIOY}, 28, v{vIOY}')
    e(f'v_add_u32 v{vIOY}, s6, v{vIOY}')
    e(f's_mul_i32 s9, s3, {WWAVE}')
    e(f'v_and_b32 v{t0}, 2, v{vG}')
    e(f'v_add_u32 v{t0}, v{t0}, v{vG}')
    e(f'v_lshlrev_b32 v{t1}, 4, v{vN}')
    e(f'v_lshl_add_u32 v{vWD}, v{t0}, 10, v{t1}')
    e('s_bfe_u32 s8, s2, 0x30003')
    if 'norot' in OPTS: e('s_mov_b32 s8, 0')
    e('s_mul_i32 s44, s8, 1056')
    e('s_and_b32 s12, s8, 4'); e('s_add_u32 s12, s12, s8')
    e('s_lshl_b32 s7, s3, 5'); e('s_add_u32 s12, s12, s7')
    e('s_lshl_b32 s45, s12, 8')
    e('s_add_u32 m0, s44, s9')
    e(f'v_lshlrev_b32 v{vK4}, 2, v{vK}')
    e(f's_mul_i32 s5, s3, {ROWB}')
    e(f's_add_u32 s5, s5, {ROWS}')
    e('s_mov_b32 s42, 25600000'); e('s_mov_b32 s43, 0x00020000')
    e('s_mov_b32 s54, 32768'); e('s_mov_b32 s55, 0x00020000')
    e('s_mov_b32 s38, 2048'); e('s_mov_b32 s39, 0x00020000')
    e('s_mov_b32 s35, 0xff800000')
    e(f'v_xor_b32 v{t0}, v{vN}, v{vG}')
    e(f'v_lshlrev_b32 v{vCS}, 4, v{t0}')
    e(f'v_and_b32 v{vCSX}, 0x70, v{vCS}')
    e('s_movk_i32 s47, 128')
    math(optval('m0', 17))
    stamp(kind='q')
    e('s_waitcnt lgkmcnt(0)')
    stamp(kind='pq'); amp(1)
    SI = optval('si', 0)
    if SI: e('s_load_dwordx16 s[60:75], s[16:17], s6')
    else: e(f'global_load_dwordx2 {vr(vIDX[0],2)}, v{vIO}, s[16:17] nt')
    e('s_mov_b32 s52, s24'); e('s_mov_b32 s53, s25')
    if not SI: e(f'global_load_dwordx3 {vr(vIDX[4],3)}, v{vIOY}, s[16:17] offset:64 nt')
    e(f'global_load_dword v{vSH}, v{vK4}, s[28:29]')
    e(f'global_load_dword v{vSB2}, v{vK4}, s[26:27]')
    e(f'global_load_dword v{vSP}, v{vK4}, s[30:31]')
    MI = optval('mi', 8)
    for i in range(8):
        if i:
            e(f's_xor_b32 s46, s44, {1056*i}'); e('s_add_u32 m0, s46, s9')
            e(f's_xor_b32 s46, s45, {256*((i&3) + 8*(i>>2))}')
        if i >= 1: math(MI)
        e(f'buffer_load_dwordx4 v{vWD}, s[52:55], s{46 if i else 45} offen lds')
        if i % 4 == 3: stamp(kind='q')
    if SI: e(f'global_load_dwordx3 {vr(vIDX[4],3)}, v{vIOY}, s[16:17] offset:64 nt')
    e('s_mov_b32 s40, s18'); e('s_mov_b32 s41, s19')
    if SI: e(f'v_mov_b64 {vr(vIDX[2],2)}, 0')
    math(optval('m2', 1000))
    def hop():
        if 'nohop' not in OPTS:
            for k in range(4):
                e(f's_cmp_eq_u32 s3, {k}')
                e(f's_cbranch_scc1 L_stub{k}')
        e('L_back:')
    if 'earlyhop' in OPTS: hop()
    e(f's_mov_b32 m0, s5')
    stamp(kind='pq')
    e('s_waitcnt lgkmcnt(0)' if SI else 's_waitcnt vmcnt(12)')
    amp(2)
    stamp(kind='pq')
    def spread(i):
        for r in range(8): e(f'v_writelane_b32 v{vIDX[2+i]}, s{60+8*i+r}, {8*r}')
    def bcast(i):
        e(f'v_mov_b32_dpp v{vIDX[i]}, v{vIDX[2+i]} row_newbcast:0 row_mask:0xf bank_mask:0x3')
        e(f'v_mov_b32_dpp v{vIDX[i]}, v{vIDX[2+i]} row_newbcast:8 row_mask:0xf bank_mask:0xc')
    def xdma(half):
        for i in range(2):
            if SI and not half: spread(i); bcast(i)
            if i or half: e(f's_add_u32 m0, s5, {1088*(i + 2*half)}')
            if not half: e(f'v_lshl_add_u32 v{vIDX[i]}, v{vIDX[i]}, 8, v{vCSX}')
            else: e('s_nop 0')
            e(f'buffer_load_dwordx4 v{vIDX[i]}, s[40:43], {"s47" if half else 0} offen nt lds')
    def ydma():
        e('s_mov_b32 exec_hi, 0x0000ffff')
        for q in range(3):
            if q == 2: e('s_mov_b32 exec_hi, -1')
            e(f's_add_u32 m0, s5, {1088*(4+q)}')
            e(f'v_lshl_add_u32 v{vIDX[4+q]}, v{vIDX[4+q]}, 8, v{vCS}')
            e(f'buffer_load_dwordx4 v{vIDX[4+q]}, s[40:43], 0 offen nt lds')
    xdma(0)
    XB = optval('xb', 2)
    if XB == 0: xdma(1)
    stamp(kind='q')
    math(1000)
    def jump():
        if 'earlyhop' not in OPTS: hop()
        e('s_branch L_main2')
        e('.p2align 12')
        e('L_main:')
        e('s_cbranch_scc1 L_back')
        e('L_main2:')
        stamp(kind='pq')
    JP = optval('jp', 0)
    if JP == 0: jump()
    if XB == 1: xdma(1)
    rd = []
    for s in range(4):
        for t in range(8):
            for hh in range(2):
                rd.append(f'ds_read_b64_tr_b16 {ar(16*t+4*s+2*hh,2)}, v{vTR} offset:{WWAVE*s+256*hh+32*t}')
    def sfr(c, k): return f'ds_read_b128 {SF(c,k)}, v{vCL[c]} offset:{VEC + 128*(k&1) + 512*(k>>1)}'
    e(f's_waitcnt vmcnt({(10 if XB > 1 else 12) + SI})')
    stamp(kind='r')
    e(f'ds_write_b32 v{vK4}, v{vSH} offset:{VHN}')
    e(f'v_lshlrev_b32 v{vSB}, 16, v{vSB2}')
    e(f'v_and_b32 v{vSB2}, 0xffff0000, v{vSB2}')
    e(f'ds_write_b64 v{vAB}, {vr(vSB,2)} offset:{VB}')
    e(f'ds_write_b32 v{vAH}, v{vSH} offset:{VH}')
    e(f'ds_write_b32 v{vAP}, v{vSP} offset:{VP}')
    for s in range(4):
        e(f'ds_read_b128 {vr(HB+4*s,4)}, v{vHB} offset:{VHN+64*s}')
    for t in range(8):
        e(f'ds_read_b128 {vr(BIAS+4*t,4)}, v{vHB} offset:{VB+64*t}')
    NE = optval('ne', 1)
    for c in range(NE): e(sfr(c, 0)); e(sfr(c, 1))
    if XB == 2: xdma(1)
    stamp(kind='pqr')
    if JP == 1: jump()
    e(f's_waitcnt vmcnt({(4 if XB <= 2 else 2) + SI})')
    amp(5)
    stamp(kind='pqr')
    for Tt in range(2):
        for s in range(4):
            e(f'ds_read_b128 {vr(WRAW+16*Tt+4*s,4)}, v{vWW} offset:{512*Tt+64*s}')
    if XB == 3: xdma(1)
    if JP == 2: jump()
    e('s_barrier')
    stamp(kind='pr')
    for i in range(8): e(rd[i])
    e('s_waitcnt lgkmcnt(8)')
    for Tt in range(2):
        for s in range(4):
            c = '0' if s == 0 else vr(UA+4*Tt, 4)
            e(f'v_mfma_f32_16x16x32_bf16 {vr(UA+4*Tt,4)}, {vr(HB+4*s,4)}, {vr(WRAW+16*Tt+4*s,4)}, {c}')
            e(rd[8 + 2*(4*Tt + s)]); e(rd[9 + 2*(4*Tt + s)])
    stamp(kind='r')
    for i in range(24, 31): e(rd[i])
    e(f'v_cvt_pk_bf16_f32 v{t2}, v{UA}, v{UA+4}')
    e(f'ds_write_b16 v{vAU}, v{t2} offset:{VU}')
    e(f'ds_write_b16_d16_hi v{vAU}, v{t2} offset:{VU+32}')
    for x in rd[31:48]: e(x)
    e('s_waitcnt vmcnt(4) lgkmcnt(15)' if SI else 's_waitcnt lgkmcnt(15)')
    e('s_barrier')
    e(sfr(0, 2)); e(sfr(0, 3))
    YP = optval('yp', 0)
    if YP == 2:
        for q in range(3):
            e(f's_add_u32 m0, s5, {1088*(4+q)}'); e(rd[48+5*q])
            e(f'v_lshl_add_u32 v{vIDX[4+q]}, v{vIDX[4+q]}, 8, v{vCS}'); e(rd[49+5*q])
            e(f'buffer_load_dwordx4 v{vIDX[4+q]}, s[40:43], 0 offen nt lds')
            for x in rd[50+5*q:53+5*q]: e(x)
        e(rd[63])
    else:
        for x in rd[48:]: e(x)
    if YP == 1: ydma()
    stamp(kind='pr'); amp(6)
    e(f's_waitcnt vmcnt({5 if YP else 2})')
    stamp(kind='a'); amp(3)
    for s in range(2):
        e(f'ds_read_b128 {vr(RS["X"]+16+4*s,4)}, v{vXA} offset:{64*s}')
    if 'pretouch' in OPTS: e(f'buffer_load_ushort v{vPF}, v{VOFF}, s[36:39], 0 offen')
    if YP == 0: ydma()
    e('s_cmp_eq_u32 s3, 4')
    global DEFER
    DEFER = [(c, k0, sfr(c, k0), sfr(c, k0 + 1)) for c in range(4) for k0 in (2, 0) if not (c == 0 and k0 == 2) and not (c < NE and k0 == 0)]
    return vXA

def main_phase(vXA):
    seq = []; edges = []; mem = []
    def a(s, info=None):
        x = Ins(s); x.info = info; seq.append(x); return x
    def load_set(S, addrs, vmw, earliest, lat):
        base = RS[S]
        w = a(f's_waitcnt vmcnt({vmw})', ('early', earliest)); mem.append(w)
        rd = [a(f'ds_read_b128 {vr(base+16+4*s,4)}, v{addrs} offset:{64*s}') for s in range(4)]
        mem.extend(rd)
        nd = 0
        if lat:
            wl = a('s_waitcnt lgkmcnt(0)'); mem.append(wl); edges.append((rd[3], wl, lat))
        for s in range(4):
            if not lat:
                wl = a(f's_waitcnt lgkmcnt({3-s+nd})'); mem.append(wl)
            for i in range(4 * s, 4 * s + 4):
                x = a(f'v_lshlrev_b32 v{base+2*i}, 16, v{base+16+i}'); edges.append((wl, x, 0))
                x = a(f'v_and_b32 v{base+2*i+1}, 0xffff0000, v{base+16+i}'); edges.append((wl, x, 0))
    prn = [0]
    def gen(t, ss=range(4)):
        P, Dp, p = TILES[t]
        for s in ss:
            for i in range(4):
                q = PR + 2 * (prn[0] % 4); prn[0] += 1
                for h in range(2):
                    r = 8 * s + 2 * i + h
                    if p == 'id': a(f'v_mul_f32 v{q+h}, v{RS[Dp]+r}, v{RS[P]+r}')
                    else: a(f'v_mul_f32_dpp v{q+h}, v{RS[Dp]+r}, v{RS[P]+r} {p}{FULL}')
                a(f'v_cvt_pk_bf16_f32 v{BF[t&1]+4*s+i}, v{q}, v{q+1}')
    base = RS['X']
    def unpack(s, wl):
        for i in range(4 * s, 4 * s + 4):
            x = a(f'v_lshlrev_b32 v{base+2*i}, 16, v{base+16+i}'); edges.append((wl, x, 0))
            x = a(f'v_and_b32 v{base+2*i+1}, 0xffff0000, v{base+16+i}'); edges.append((wl, x, 0))
    for s in range(2):
        wl = a(f's_waitcnt lgkmcnt({1-s})'); mem.append(wl); unpack(s, wl)
    w = a('s_waitcnt vmcnt(%d)' % (4 if 'pretouch' in OPTS else 3), ('early', optval('xe', 12))); mem.append(w)
    rd = [a(f'ds_read_b128 {vr(base+16+4*s,4)}, v{vXA} offset:{2176+64*(s&1)}') for s in (2, 3)]; mem.extend(rd)
    wl = a('s_waitcnt lgkmcnt(0)'); mem.append(wl); edges.append((rd[1], wl, optval('xl', 20)))
    unpack(2, wl); unpack(3, wl)
    wdef = {}
    sp = optval('sp', 5)
    for i, (c, k0, r0, r1) in enumerate(DEFER):
        d0 = a(r0, ('early', 22 + sp * 2 * i)); d1 = a(r1, ('early', 22 + sp * (2 * i + 1)))
        w = a('s_waitcnt lgkmcnt(0)'); edges.append((d1, w, 10))
        mem.extend([d0, d1, w])
        wdef[(c, k0)] = w
    for t in range(NT):
        if t == TY: load_set('Y', YA, 0, optval('ye', 170), 24)
        if t == TZ: load_set('Z', ZA, 0, optval('ze', 300), 24)
        if t == 0:
            gen(0, (0, 1)); gen(1, (0, 1)); gen(0, (2, 3)); gen(1, (2, 3))
        elif t > 1: gen(t)
        G, c = t // 4, t % 4
        d = vr(DD + 4 * G, 4)
        for k in range(2):
            x = a(f'v_smfmac_f32_16x16x64_bf16 {d}, {SF(c,2+k)}, {vr(BF[t&1]+8*k,8)}, v{SIDX}', ('S', t, 36 * t + 18 + 9 * k))
            if (t, 2) in wdef: edges.append((wdef[(t, 2)], x, 0))
        for m in range(8):
            acc = vr(ACC + 4 * m, 4)
            strict = t >= optval('mm', 1)
            for s0 in range(4):
                s = 3 - s0 if (strict and m % 2 and 'nosnake' not in OPTS) else s0
                cc = vr(BIAS + 4 * m, 4) if s0 == 0 else acc
                x = a(f'v_mfma_f32_16x16x32_bf16 {acc}, {WF(m,s)}, {vr(BF[t&1]+4*s,4)}, {cc}',
                      ('M', t, m, s0, 36 * t + (4.5 * m + s0 if strict else 9 * s0 + m)))
                if strict and s0 == 0 and m > 0: edges.append((prevm, x, 0))
                prevm = x
            for h in range(2):
                a(f'v_cvt_pk_bf16_f32 v{PK+2*m+h}, |v{ACC+4*m+2*h}|, |v{ACC+4*m+2*h+1}|')
            if m % 4 == 3:
                k = m // 4
                x = a(f'v_smfmac_f32_16x16x64_bf16 {d}, {SF(c,k)}, {vr(PK+8*k,8)}, v{SIDX}', ('S', t, 36 * t + 40 + 4 * k))
                if (t, 0) in wdef: edges.append((wdef[(t, 0)], x, 0))
        if c == 3 or t == NT - 1:
            a(f'v_add_f32 v{DD+4*G}, v{DD+4*G}, v{DD+4*G+1}')
            a(f'v_add_f32 v{DD+4*G+2}, v{DD+4*G+2}, v{DD+4*G+3}')
            if G == 2: a(f'v_max3_f32 v{VM}, v{DD}, v{DD+4}, v{DD+8}')
            if G == 4:
                E = lambda G: DD + 4 * G
                Q = lambda G: DD + 4 * G + 2
                ML, F = YA, YA + 1
                a(f'v_max3_f32 v{VM}, v{VM}, v{DD+12}, v{DD+16}')
                a(f'v_mul_f32 v{ML}, v{VM}, v{VC}')
                for r in (8, 4, 2, 1):
                    a(f'v_max_f32_dpp v{VM}, v{VM}, v{VM} row_ror:{r}{FULL}')
                a(f'v_max_f32_dpp v{VM}, v{VM}, v{VM} row_bcast:15 row_mask:0xa bank_mask:0xf')
                a(f'v_max_f32_dpp v{VM}, v{VM}, v{VM} row_bcast:31 row_mask:0xc bank_mask:0xf')
                a(f'v_readlane_b32 s14, v{VM}, 63')
                a(f'v_mul_f32 v{VT0}, s14, v{VC}')
                a(f'v_sub_f32 v{F}, v{ML}, v{VT0}')
                a(f'v_exp_f32 v{F}, v{F}')
                for g2 in range(5):
                    a(f'v_fma_f32 v{E(g2)}, v{E(g2)}, v{VC}, -v{ML}')
                    a(f'v_exp_f32 v{E(g2)}, v{E(g2)}')
                a(f'v_add_f32 v{VT1}, v{E(0)}, v{E(1)}')
                a(f'v_mul_f32 v{VT2}, v{E(0)}, v{Q(0)}')
                a(f'v_fmac_f32 v{VT2}, v{E(1)}, v{Q(1)}')
                for g2 in range(2, 5):
                    a(f'v_add_f32 v{VT1}, v{VT1}, v{E(g2)}')
                    a(f'v_fmac_f32 v{VT2}, v{E(g2)}, v{Q(g2)}')
                a(f'v_mul_f32 v{VT1}, v{VT1}, v{F}')
                a(f'v_mul_f32 v{VT2}, v{VT2}, v{F}')
                for r in (8, 4, 2, 1):
                    a(f'v_add_f32_dpp v{VT1}, v{VT1}, v{VT1} row_ror:{r}{FULL}')
                    a(f'v_add_f32_dpp v{VT2}, v{VT2}, v{VT2} row_ror:{r}{FULL}')
                for b, mk in ((15, '0xa'), (31, '0xc')):
                    a(f'v_add_f32_dpp v{VT1}, v{VT1}, v{VT1} row_bcast:{b} row_mask:{mk} bank_mask:0xf')
                    a(f'v_add_f32_dpp v{VT2}, v{VT2}, v{VT2} row_bcast:{b} row_mask:{mk} bank_mask:0xf')
                a(f'v_readlane_b32 s15, v{VT1}, 63')
                a(f'v_readlane_b32 s34, v{VT2}, 63')
    u0, u1, M5 = YA + 2, YA + 3, ZA
    a(f'v_max_f32 v{M5}, s14, v{E(5)}')
    for r in (4, 2, 1):
        a(f'v_max_f32_dpp v{M5}, v{M5}, v{M5} row_ror:{r}{FULL}')
    a(f'v_mul_f32 v{u0}, v{M5}, v{VC}')
    a(f'v_fma_f32 v{E(5)}, v{E(5)}, v{VC}, -v{u0}')
    a(f'v_sub_f32 v{u1}, v{VT0}, v{u0}')
    a(f'v_exp_f32 v{E(5)}, v{E(5)}')
    a(f'v_exp_f32 v{u1}, v{u1}')
    a(f'v_mul_f32 v{Q(5)}, v{E(5)}, v{Q(5)}')
    for r in (4, 2, 1):
        a(f'v_add_f32_dpp v{E(5)}, v{E(5)}, v{E(5)} row_ror:{r}{FULL}')
        a(f'v_add_f32_dpp v{Q(5)}, v{Q(5)}, v{Q(5)} row_ror:{r}{FULL}')
    a(f'v_fmac_f32 v{E(5)}, s15, v{u1}')
    a(f'v_fmac_f32 v{Q(5)}, s34, v{u1}')
    a(f'v_rcp_f32 v{E(5)}, v{E(5)}')
    a(f'v_mul_f32 v{Q(5)}, v{Q(5)}, v{E(5)}')
    a(f'v_cvt_pk_bf16_f32 v{Q(5)}, v{Q(5)}, v{Q(5)}')
    if 'nostore' not in OPTS: a(f'buffer_store_short v{Q(5)}, v{VOFF}, s[36:39], 0 offen' + ['', ' sc0 sc1', ' nt', ' sc1', ' sc0 sc1 nt'][optval('stm', 0)])
    for x, y in zip(mem, mem[1:]): edges.append((x, y, 0))
    nodes, byins = build_dag(seq, edges)
    BIG = 10 ** 6
    for n in reversed(nodes):
        inf = n.ins.info
        if n.ins.kind == 'mfma': n.prio = inf[-1]
        else:
            lat = lambda q: (1 + max(d for p, d in q.preds if p is n)) * optval('lw', 40) / 100.0
            n.prio = min([q.prio - lat(q) for q in n.succs], default=36 * NT + optval('end', 20))
        if inf and inf[0] == 'early': n.earliest = inf[1]
    pend_m = [n for n in nodes if n.ins.kind == 'mfma']
    pend_v = sorted([n for n in nodes if n.ins.kind != 'mfma'], key=lambda n: (n.prio, n.idx))
    pos = 0; t = 0; pipe = 0; nm = 0; last = None; out = []; nops = 0; tile_t = {}
    def ready(n):
        return n.earliest <= nm and all(p.pos is not None and pos - p.pos - 1 >= d for p, d in n.preds)
    def pick_m():
        win = pend_m[:80]
        rd = [n for n in win if ready(n)]
        if not rd: return None
        if last is not None and last[0] == 'M' and last[3] < 3:
            for n in rd:
                i = n.ins.info
                if i[0] == 'M' and i[1:3] == last[1:3]: return n
        sm = [n for n in rd if n.ins.info[0] == 'S']
        mm = [n for n in rd if n.ins.info[0] == 'M']
        if sm and not (last is not None and last[0] == 'S' and mm): return sm[0]
        return min(mm, key=lambda n: n.ins.info[1:4])
    def pick_v():
        for n in pend_v[:400]:
            if ready(n): return n
        return None
    FREE = 'nofree' not in OPTS
    while pend_m or pend_v:
        if FREE and out and out[-1].kind == 'mfma' and out[-1].op.startswith('v_mfma'):
            f = next((n for n in pend_v if n.ins.kind in ('ds', 'wait') and ready(n)), None)
            if f is not None:
                f.pos = pos; pend_v.remove(f); out.append(f.ins); pos += 1
                continue
        m = pick_m(); v = None
        if m is None or t < pipe: v = pick_v()
        if v is not None:
            v.pos = pos; pend_v.remove(v); out.append(v.ins); pos += 1; t += 8 if v.ins.op in ('v_exp_f32', 'v_rcp_f32') else 4
        elif m is not None:
            t = max(t, pipe)
            m.pos = pos; pend_m.remove(m); out.append(m.ins); pos += 1
            pipe = t + 16; t += optval('sc', 12) if m.ins.info[0] == 'S' else 8; nm += 1; last = m.ins.info
            tile_t.setdefault(last[1], t)
        else:
            out.append(Ins('s_nop 0')); pos += 1; t += 4; nops += 1
    if VERB:
        print('model cycles', t, 'nops', nops, 'tile starts', [tile_t[k] for k in sorted(tile_t)])
    for x in out:
        if x.kind == 'nop' and prog[-1].kind == 'nop' and int(prog[-1].ops[0]) < 15:
            prog[-1] = Ins(f's_nop {int(prog[-1].ops[0]) + 1}')
        else:
            prog.append(x)
            inf = getattr(x, 'info', None)
            if inf and inf[0] == 'M' and inf[2:4] == (0, 0) and (inf[1] in (0, 1, 2, 3, 7, 11, 15, 19)): stamp(kind='t')

def tail():
    amp(4)
    if AMPA >= 0:
        e('s_memrealtime s[94:95]')
        e('s_waitcnt lgkmcnt(0)')
        e('s_sub_u32 s92, s92, s90')
        e(f's_mul_i32 s92, s92, {AMPK}')
        e('s_min_u32 s92, s92, 20000')
        e('L_spin:')
        e('s_memrealtime s[96:97]')
        e('s_waitcnt lgkmcnt(0)')
        e('s_sub_u32 s96, s96, s94')
        e('s_cmp_lt_u32 s96, s92')
        e('s_cbranch_scc1 L_spin')
    if TIMING:
        stamp(kind='a'); stamp(True)
        e('s_waitcnt lgkmcnt(0)')
        e('s_mov_b32 s58, 0x1000000'); e('s_mov_b32 s59, 0x00020000')
        e('s_mul_i32 s9, s4, 128')
        e(f'v_mov_b32 v{VT0}, 0x7ffffff0')
        e(f'v_writelane_b32 v{VT0}, s9, 0')
        for i in range(stampn[0]):
            e(f'v_mov_b32 v{VT1}, s{76+2*i}')
            e(f'buffer_store_dword v{VT1}, v{VT0}, s[56:59], 0 offen offset:{4*i}')
    e('L_end:')

vXA = prologue()
n_pro = len(prog)
main_phase(vXA)
tail()
prog, nins = fix_hazards(prog, VERB)
errs = check_waitcnt(prog)
assert not errs, '\n'.join(errs[:20])
if VERB: print('instructions', len(prog), 'inserted states', nins, 'stamps', stampn[0])

def render(prog):
    body = '\n'.join(x.text if x.kind == 'label' else '    ' + x.text for x in prog)
    return HDR + HEAD + body + FOOT

HEAD = f"""; @launch grid=(256,1,1) block=(256,1,1) lds={LDS_TOTAL}
.amdgcn_target "amdgcn-amd-amdhsa--gfx950"
.text
.globl standalone__factorization_afm__recsys_kernel
.p2align 8
.type standalone__factorization_afm__recsys_kernel,@function
standalone__factorization_afm__recsys_kernel:
"""
FOOT = """
s_endpgm
.section .rodata,"a"
.p2align 6
.amdhsa_kernel standalone__factorization_afm__recsys_kernel
  .amdhsa_next_free_vgpr 448
  .amdhsa_next_free_sgpr 102
  .amdhsa_accum_offset 256
  .amdhsa_group_segment_fixed_size 0
  .amdhsa_kernarg_size 88
  .amdhsa_user_sgpr_count 2
  .amdhsa_user_sgpr_kernarg_segment_ptr 1
  .amdhsa_system_sgpr_workgroup_id_x 1
  .amdhsa_float_denorm_mode_32 3
.end_amdhsa_kernel
"""
def sizes(ins):
    import subprocess, tempfile, re
    d = tempfile.mkdtemp()
    open(d + '/a.s', 'w').write('.amdgcn_target "amdgcn-amd-amdhsa--gfx950"\n.text\nL_spin:\nL_back:\n' + '\n'.join(x.text for x in ins) + '\n')
    subprocess.run(['clang', '-x', 'assembler', '-target', 'amdgcn-amd-amdhsa', '-mcpu=gfx950', '-c', d + '/a.s', '-o', d + '/a.o'], check=True)
    o = subprocess.run(['llvm-objdump', '-d', '--mcpu=gfx950', d + '/a.o'], capture_output=True, text=True).stdout
    r = [4 * len(m.group(1).split()) for m in re.finditer(r'// [0-9A-F]{12}: ([0-9A-F ]+)', o)]
    assert len(r) == len(ins)
    return r
if 'nohop' not in OPTS:
    i0 = next(i for i, x in enumerate(prog) if x.text == 'L_main:') + 1
    body = [x for x in prog[i0:] if x.kind != 'label']
    sz = dict(zip(map(id, body), sizes(body)))
    newp = prog[:i0]; off = 0; k = 0; prev = None
    for x in prog[i0:]:
        if k < 4 and off >= 4096 * (k + 1) + optval('so', 0) and prev is not None and prev.op.startswith('v_mfma') and x.kind == 'valu':
            newp += [Ins(f'L_stub{k}:'), Ins('s_cbranch_scc1 ' + ('L_main2' if 'earlyhop' not in OPTS else 'L_main' if k == 0 else 'L_back'))]; off += 4; k += 1
        newp.append(x); off += sz.get(id(x), 0); prev = x
    assert k == 4, k
    prog = newp
    if VERB: print('main bytes', off)
open(OUT, 'w').write(render(prog))
```

```python
import sys, os
sys.path.insert(0, os.path.dirname(os.path.abspath(__file__)))
from asmlib import Ins, fix_hazards, check_waitcnt, build_dag

OUT = sys.argv[1] if len(sys.argv) > 1 else 'standalone__factorization_afm__recsys.s'
OPTS = set(sys.argv[2].split(',')) if len(sys.argv) > 2 else set()
TIMING = 'time' in OPTS
VERB = 'v' in OPTS
def optval(name, default):
    for o in OPTS:
        if o.startswith(name + '='):
            return int(o.split('=')[1])
    return default

HDR = open('standalone__factorization_afm__recsys.s.ref').read().split('; Override launch')[0]

XF = list(range(16))
YF = [22, 23, 17, 23, 25, 18, 24, 19, 21, 20, 23, 25, 24, 22, 16, 21]
ZF = [23, 20, 20, 16, 22, 19, 21, 16, 17, 18, 22, 18, 25, 24, 17, 19]
def pat(p):
    if p == 'id': return list(range(16))
    k, v = p.split(':'); v = int(v)
    return [(n - v) % 16 for n in range(16)] if k == 'row_ror' else [v] * 16
TILES = [('X', 'X', f'row_ror:{r}') for r in range(1, 8)]
TILES += [('X', 'Y', f'row_newbcast:{YF.index(f)}') for f in range(16, 26)]
TILES += [('Y', 'Z', 'row_ror:13'), ('Y', 'Z', 'row_ror:5'), ('Y', 'Z', 'id')]
TILES += [('X', 'X', 'row_ror:8')]
TY, TZ = 7, 17
NT = len(TILES)
FS = {'X': XF, 'Y': YF, 'Z': ZF}
seen = set(); VALID = []
for a, b, p in TILES:
    v = []
    for n in range(16):
        i, j = FS[a][n], FS[b][pat(p)[n]]
        assert i != j
        key = (min(i, j), max(i, j))
        v.append(key not in seen); seen.add(key)
    VALID.append(v)
assert len(seen) == 325 and sum(map(sum, VALID)) == 325
NG = (NT + 3) // 4
def group_mask(G):
    m = 0
    for c in range(4):
        t = 4 * G + c
        for n in range(16):
            if t < NT and VALID[t][n]: m |= 1 << (16 * c + n)
    return m

WWAVE = 8448
VEC = 4 * WWAVE
ROWS = VEC + 2944; ROWB = 7 * 1088
VH, VZ0, VU, VP, VB, VHN = VEC, VEC + 384, VEC + 640, VEC + 1024, VEC + 2176, VEC + 2688
LDS_TOTAL = ROWS + 4 * ROWB

SIDX = 1
YA, ZA = 2, 6
VC, VOFF, VM, VT0, VT1, VT2 = 10, 11, 12, 13, 14, 15
RS = {'X': 16, 'Y': 48, 'Z': 80}
BIAS, BF, ACC, PK, PR, DD = 112, [144, 160], 176, 208, 224, 232
def vr(a, n=1): return f'v{a}' if n == 1 else f'v[{a}:{a+n-1}]'
def ar(a, n=1): return f'a{a}' if n == 1 else f'a[{a}:{a+n-1}]'
def WF(t, s): return ar(16 * t + 4 * s, 4)
def SF(c, k): return ar(128 + 16 * c + 4 * k, 4)
FULL = ' row_mask:0xf bank_mask:0xf'

prog = []
def e(s, tag=None):
    x = Ins(s, tag); prog.append(x); return x
stampn = [0]
AMPA, AMPB, AMPK = optval('ampa', -1), optval('ampb', -1), optval('ampk', 8)
def amp(pt):
    if pt == AMPA: e('s_memrealtime s[90:91]')
    if pt == AMPB: e('s_memrealtime s[92:93]')
def stamp(real=False, kind='p'):
    mode = 't' if 'tt' in OPTS else 'q' if 'tq' in OPTS else 'r' if 'tr' in OPTS else 'p'
    if TIMING and (real or kind == 'a' or mode in kind):
        e(f's_mem{"real" if real else ""}time s[{76+2*stampn[0]}:{77+2*stampn[0]}]'); stampn[0] += 1; assert stampn[0] <= 13

POS = [16, 17, 18, 20, 21, 22, 24, 25, 26, 27]
def nib(F):
    P = [POS[f - 16] - 16 for f in F]
    lo = sum(P[n] << (4 * n) for n in range(8)); hi = sum(P[n + 8] << (4 * n) for n in range(8))
    return lo, hi

def prologue():
    T = iter(range(48, 80))
    tp = next(T); next(T)
    vN, vG, vK, vIO, vK4, vHB, vWD, vCS, vWW, vTR, vN2, vN3, vIOY, vCSX = [next(T) for _ in range(14)]
    vAH, vAP, vAU, vAB, vAZ, t0, t1, t2, vPF = [next(T) for _ in range(9)]
    vCL = [VM, VT0, VT1, VT2]
    vIDX = list(range(PK, PK + 7))
    vXA = PK + 8
    vSH, vSP, vSB, vSB2 = PK + 12, PK + 13, PK + 14, PK + 15
    WRAW = RS['Z']; HB = BF[0]; UA = ACC

    M = []
    m = M.append
    m('s_lshl_b32 s8, s4, 1')
    m(f'v_mov_b32 v{VOFF}, 0x7ffffff0')
    m(f'v_writelane_b32 v{VOFF}, s8, 0')
    m(f'v_lshlrev_b32 v{vHB}, 4, v{vG}')
    m(f'v_lshrrev_b32 v{vN2}, 2, v{vN}')
    m(f'v_and_b32 v{vN3}, 3, v{vN}')
    m('s_movk_i32 s12, 1056')
    m(f'v_and_b32 v{t0}, 2, v{vN2}')
    m(f'v_lshl_add_u32 v{t0}, v{t0}, 1, v{vN3}')
    m(f'v_mad_u32_u24 v{t0}, v{t0}, s12, v{vHB}')
    m(f'v_and_b32 v{t1}, 1, v{vN2}')
    m(f'v_lshl_add_u32 v{t1}, v{t1}, 8, s9')
    m(f'v_add_u32 v{vWW}, v{t0}, v{t1}')
    m(f'v_and_b32 v{t0}, 1, v{vG}')
    m(f'v_lshl_add_u32 v{t0}, v{t0}, 2, v{vN2}')
    m(f'v_and_b32 v{t1}, 2, v{vG}')
    m(f'v_lshlrev_b32 v{t1}, 8, v{t1}')
    m(f'v_lshl_add_u32 v{t1}, v{vN3}, 3, v{t1}')
    m(f'v_mad_u32_u24 v{vTR}, v{t0}, s12, v{t1}')
    m(f'v_lshlrev_b32 v{vAB}, 3, v{vK}')
    m(f'v_and_b32 v{t2}, 1, v{vK}')
    m(f'v_lshlrev_b32 v{t0}, 2, v{t2}')
    m(f'v_bfe_u32 v{t1}, v{vK}, 1, 2')
    m(f'v_and_or_b32 v{t1}, v{vK}, 56, v{t1}')
    m(f'v_add_lshl_u32 v{vAP}, v{t0}, v{t1}, 2')
    m(f'v_bfe_u32 v{t1}, v{vK}, 3, 1')
    m(f'v_and_or_b32 v{t1}, v{vK}, 50, v{t1}')
    m(f'v_or_b32 v{t0}, v{t0}, v{t1}')
    m(f'v_and_b32 v{t1}, 4, v{vK}')
    m(f'v_lshl_or_b32 v{t0}, v{t1}, 1, v{t0}')
    m(f'v_lshlrev_b32 v{vAH}, 2, v{t0}')
    m(f'v_and_b32 v{t0}, 2, v{vN}')
    m('s_lshl_b32 s8, s3, 6')
    m(f'v_lshl_add_u32 v{t1}, v{t0}, 3, s8')
    m(f'v_lshl_add_u32 v{t1}, v{vN2}, 2, v{t1}')
    m(f'v_lshl_add_u32 v{vAU}, v{t2}, 1, v{t1}')
    m(f'v_lshlrev_b32 v{t1}, 4, v{t2}')
    m(f'v_lshl_or_b32 v{t1}, v{vG}, 5, v{t1}')
    m('s_movk_i32 s13, 192')
    m(f'v_mad_u32_u24 v{t1}, v{t0}, s13, v{t1}')
    m(f'v_and_b32 v{t0}, 2, v{vG}')
    m(f'v_lshlrev_b32 v{t0}, 5, v{t0}')
    m(f'v_sub_u32 v{vCL[0]}, {1280+64}, v{t0}')
    m(f'v_mov_b32_dpp v{vCL[0]}, v{t1} quad_perm:[0,1,2,3] row_mask:0xf bank_mask:0x1')
    m('s_mov_b32 s13, 0xaaaa')
    m(f'v_mov_b32 v{SIDX}, 0x4444')
    m(f'v_mad_u32_u24 v{SIDX}, v{t2}, s13, v{SIDX}')
    for c in range(1, 4):
        m(f'v_mov_b32_dpp v{vCL[c]}, v{vCL[0]} row_ror:{4*c}{FULL}')
    m(f'v_mov_b64 {vr(DD,2)}, 0'); m(f'v_mov_b64 {vr(DD+2,2)}, 0')
    m(f'v_mul_u32_u24 v{t0}, 896, v{vG}')
    m(f'v_min_u32 v{t0}, 1536, v{t0}')
    m(f'v_lshl_add_u32 v{vAZ}, v{vN}, 4, v{t0}')
    m(f'ds_write_b128 v{vAZ}, {vr(DD,4)} offset:{VZ0}')
    m(f'v_lshl_add_u32 v{t0}, v{vN}, 7, s5')
    m(f'v_and_b32 v{t1}, 8, v{vN}')
    m(f'v_lshl_add_u32 v{t0}, v{t1}, 3, v{t0}')
    m(f'v_lshlrev_b32 v{t1}, 3, v{vN}')
    m(f'v_xor_b32 v{t1}, v{t1}, v{vHB}')
    m(f'v_and_or_b32 v{vXA}, v{t1}, 48, v{t0}')
    m(f'v_lshlrev_b32 v{t2}, 2, v{vN}')
    m(f's_add_u32 s8, s5, {4*1088}')
    for F, A in ((YF, YA), (ZF, ZA)):
        lo, hi = nib(F)
        m(f's_mov_b32 s12, {lo:#x}'); m(f's_mov_b32 s13, {hi:#x}')
        m(f'v_lshrrev_b64 {vr(tp,2)}, v{t2}, s[12:13]')
        m(f'v_and_b32 v{t0}, 15, v{tp}')
        m(f'v_lshl_add_u32 v{t1}, v{t0}, 8, s8')
        m(f'v_bfe_u32 v{t0}, v{tp}, 2, 2')
        m(f'v_lshl_add_u32 v{t1}, v{t0}, 6, v{t1}')
        m(f'v_xor_b32 v{t0}, v{tp}, v{vG}')
        m(f'v_and_b32 v{t0}, 3, v{t0}')
        m(f'v_lshl_add_u32 v{A}, v{t0}, 4, v{t1}')
    if optval('mu', 0):
        m(f'v_lshlrev_b32 v{t0}, 4, v{vN3}')
        m('s_movk_i32 s12, 0x3f80'); m('s_mov_b32 s13, 0')
        m(f'v_lshlrev_b64 {vr(tp,2)}, v{t0}, s[12:13]')
        m('s_mov_b32 s12, 0x00f0000f'); m('s_mov_b32 s13, 0xf0000f00')
        m(f'v_cndmask_b32 v{tp}, 0, v{tp}, s[12:13]')
        m(f'v_cndmask_b32 v{tp+1}, 0, v{tp+1}, s[12:13]')
        for r in (192, 193, 196, 197): m(f'v_accvgpr_write_b32 a{r}, 0')
        m(f'v_accvgpr_write_b32 a194, v{tp}'); m(f'v_accvgpr_write_b32 a195, v{tp+1}')
    assert group_mask(0) == (1 << 64) - 1
    for G in range(1, NG):
        gm = group_mask(G)
        m(f'v_mov_b64 {vr(DD+4*G,2)}, 0'); m(f'v_mov_b64 {vr(DD+4*G+2,2)}, 0')
        if gm != (1 << 64) - 1 and G != NG - 1:
            for ln in range(64):
                if not gm >> ln & 1: m(f'v_writelane_b32 v{DD+4*G}, s35, {ln}')
    m(f'v_mov_b32 v{VC}, 0x3f38aa3b')
    if VERB: print('math instructions', len(M))
    def math(k):
        for _ in range(min(k, len(M))): e(M.pop(0))

    stamp(True); stamp(kind='a'); amp(0)
    e('s_load_dwordx16 s[16:31], s[0:1], 0')
    e('s_load_dwordx2 s[36:37], s[0:1], 64')
    if TIMING: e('s_load_dwordx2 s[56:57], s[0:1], 80')
    e('s_cmp_ge_u32 s2, 256')
    e('s_cbranch_scc1 L_end')
    e('s_getpc_b64 s[10:11]')
    e('L_pc:')
    PF = optval('pf', 2)
    if PF == 6:
        e(f'v_lshlrev_b32 v{t0}, 7, v0')
    else:
        e(f's_lshl_b32 s8, s2, {PF + 6}')
        e(f'v_lshrrev_b32 v{t1}, 6, v0')
        e(f'v_and_b32 v{t0}, {(1 << PF) - 1}, v0')
        e(f'v_lshl_or_b32 v{t0}, v{t1}, {PF}, v{t0}')
        e(f's_and_b32 s8, s8, {0x7fff & ~((1 << (PF + 9)) - 1):#x}')
        e(f'v_lshl_or_b32 v{t0}, v{t0}, 7, s8')
    e(f'v_min_u32 v{t0}, L_end-L_pc, v{t0}')
    e(f'global_load_dword v{vPF}, v{t0}, s[10:11]' + (' nt' if 'pfnt' in OPTS else ''))
    e(f'v_lshrrev_b32 v{t1}, 6, v0')
    e(f'v_and_b32 v{vN}, 15, v0')
    e(f'v_readfirstlane_b32 s3, v{t1}')
    e(f'v_bfe_u32 v{vG}, v0, 4, 2')
    e(f'v_and_b32 v{vK}, 63, v0')
    if 'noremap' in OPTS:
        e('s_lshl_b32 s4, s2, 2')
    else:
        e('s_and_b32 s4, s2, 7'); e('s_lshl_b32 s4, s4, 7')
        e('s_lshr_b32 s6, s2, 3'); e('s_lshl_b32 s6, s6, 2')
        e('s_add_u32 s4, s4, s6')
    e('s_add_u32 s4, s4, s3')
    e('s_mul_i32 s6, s4, 104')
    e(f'v_and_b32 v{vIO}, 0x38, v0')
    e(f'v_add_u32 v{vIO}, s6, v{vIO}')
    e(f'v_mul_u32_u24 v{vIOY}, 12, v{vG}')
    e(f'v_min_u32 v{vIOY}, 28, v{vIOY}')
    e(f'v_add_u32 v{vIOY}, s6, v{vIOY}')
    e(f's_mul_i32 s9, s3, {WWAVE}')
    e(f'v_and_b32 v{t0}, 2, v{vG}')
    e(f'v_add_u32 v{t0}, v{t0}, v{vG}')
    e(f'v_lshlrev_b32 v{t1}, 4, v{vN}')
    e(f'v_lshl_add_u32 v{vWD}, v{t0}, 10, v{t1}')
    e('s_bfe_u32 s8, s2, 0x30003')
    if 'norot' in OPTS: e('s_mov_b32 s8, 0')
    e('s_mul_i32 s44, s8, 1056')
    e('s_and_b32 s12, s8, 4'); e('s_add_u32 s12, s12, s8')
    e('s_lshl_b32 s7, s3, 5'); e('s_add_u32 s12, s12, s7')
    e('s_lshl_b32 s45, s12, 8')
    e('s_add_u32 m0, s44, s9')
    e(f'v_lshlrev_b32 v{vK4}, 2, v{vK}')
    e(f's_mul_i32 s5, s3, {ROWB}')
    e(f's_add_u32 s5, s5, {ROWS}')
    e('s_mov_b32 s42, 25600000'); e('s_mov_b32 s43, 0x00020000')
    e('s_mov_b32 s54, 32768'); e('s_mov_b32 s55, 0x00020000')
    e('s_mov_b32 s38, 2048'); e('s_mov_b32 s39, 0x00020000')
    e('s_mov_b32 s35, 0xff800000')
    e(f'v_xor_b32 v{t0}, v{vN}, v{vG}')
    e(f'v_lshlrev_b32 v{vCS}, 4, v{t0}')
    e(f'v_and_b32 v{vCSX}, 0x70, v{vCS}')
    e('s_movk_i32 s47, 128')
    math(optval('m0', 17))
    stamp(kind='q')
    e('s_waitcnt lgkmcnt(0)')
    stamp(kind='pq'); amp(1)
    SI = optval('si', 0)
    if SI: e('s_load_dwordx16 s[60:75], s[16:17], s6')
    else: e(f'global_load_dwordx2 {vr(vIDX[0],2)}, v{vIO}, s[16:17] nt')
    e('s_mov_b32 s52, s24'); e('s_mov_b32 s53, s25')
    if not SI: e(f'global_load_dwordx3 {vr(vIDX[4],3)}, v{vIOY}, s[16:17] offset:64 nt')
    e(f'global_load_dword v{vSH}, v{vK4}, s[28:29]')
    e(f'global_load_dword v{vSB2}, v{vK4}, s[26:27]')
    e(f'global_load_dword v{vSP}, v{vK4}, s[30:31]')
    MI = optval('mi', 8)
    for i in range(8):
        if i:
            e(f's_xor_b32 s46, s44, {1056*i}'); e('s_add_u32 m0, s46, s9')
            e(f's_xor_b32 s46, s45, {256*((i&3) + 8*(i>>2))}')
        if i >= 1: math(MI)
        e(f'buffer_load_dwordx4 v{vWD}, s[52:55], s{46 if i else 45} offen lds')
        if i % 4 == 3: stamp(kind='q')
    if SI: e(f'global_load_dwordx3 {vr(vIDX[4],3)}, v{vIOY}, s[16:17] offset:64 nt')
    e('s_mov_b32 s40, s18'); e('s_mov_b32 s41, s19')
    if SI: e(f'v_mov_b64 {vr(vIDX[2],2)}, 0')
    math(optval('m2', 1000))
    def hop():
        if 'nohop' not in OPTS:
            for k in range(4):
                e(f's_cmp_eq_u32 s3, {k}')
                e(f's_cbranch_scc1 L_stub{k}')
        e('L_back:')
    if 'earlyhop' in OPTS: hop()
    e(f's_mov_b32 m0, s5')
    stamp(kind='pq')
    e('s_waitcnt lgkmcnt(0)' if SI else 's_waitcnt vmcnt(12)')
    amp(2)
    stamp(kind='pq')
    def spread(i):
        for r in range(8): e(f'v_writelane_b32 v{vIDX[2+i]}, s{60+8*i+r}, {8*r}')
    def bcast(i):
        e(f'v_mov_b32_dpp v{vIDX[i]}, v{vIDX[2+i]} row_newbcast:0 row_mask:0xf bank_mask:0x3')
        e(f'v_mov_b32_dpp v{vIDX[i]}, v{vIDX[2+i]} row_newbcast:8 row_mask:0xf bank_mask:0xc')
    def xdma(half):
        for i in range(2):
            if SI and not half: spread(i); bcast(i)
            if i or half: e(f's_add_u32 m0, s5, {1088*(i + 2*half)}')
            if not half: e(f'v_lshl_add_u32 v{vIDX[i]}, v{vIDX[i]}, 8, v{vCSX}')
            else: e('s_nop 0')
            e(f'buffer_load_dwordx4 v{vIDX[i]}, s[40:43], {"s47" if half else 0} offen nt lds')
    def ydma():
        e('s_mov_b32 exec_hi, 0x0000ffff')
        for q in range(3):
            if q == 2: e('s_mov_b32 exec_hi, -1')
            e(f's_add_u32 m0, s5, {1088*(4+q)}')
            e(f'v_lshl_add_u32 v{vIDX[4+q]}, v{vIDX[4+q]}, 8, v{vCS}')
            e(f'buffer_load_dwordx4 v{vIDX[4+q]}, s[40:43], 0 offen nt lds')
    HX = optval('hx', 0)
    if not HX: xdma(0)
    XB = optval('xb', 2)
    if XB == 0: xdma(1)
    stamp(kind='q')
    math(1000)
    def jump():
        if 'earlyhop' not in OPTS: hop()
        e('s_branch L_main2')
        e('.p2align 12')
        e('L_main:')
        e('s_cbranch_scc1 L_back')
        e('L_main2:')
        stamp(kind='pq')
    JP = optval('jp', 0)
    if JP == 0: jump()
    if HX: xdma(0)
    if XB == 1: xdma(1)
    rd = []
    for s in range(4):
        for t in range(8):
            for hh in range(2):
                rd.append(f'ds_read_b64_tr_b16 {ar(16*t+4*s+2*hh,2)}, v{vTR} offset:{WWAVE*s+256*hh+32*t}')
    def sfr(c, k): return f'ds_read_b128 {SF(c,k)}, v{vCL[c]} offset:{VEC + 128*(k&1) + 640*(k>>1)}'
    e(f's_waitcnt vmcnt({(10 if XB > 1 else 12) + SI})')
    stamp(kind='r')
    e(f'ds_write_b32 v{vK4}, v{vSH} offset:{VHN}')
    e(f'v_lshlrev_b32 v{vSB}, 16, v{vSB2}')
    e(f'v_and_b32 v{vSB2}, 0xffff0000, v{vSB2}')
    e(f'ds_write_b64 v{vAB}, {vr(vSB,2)} offset:{VB}')
    e(f'ds_write_b32 v{vAH}, v{vSH} offset:{VH}')
    e(f'ds_write_b32 v{vAP}, v{vSP} offset:{VP}')
    for s in range(4):
        e(f'ds_read_b128 {vr(HB+4*s,4)}, v{vHB} offset:{VHN+64*s}')
    for t in range(8):
        e(f'ds_read_b128 {vr(BIAS+4*t,4)}, v{vHB} offset:{VB+64*t}')
    NE = optval('ne', 1)
    for c in range(NE): e(sfr(c, 0)); e(sfr(c, 1))
    if XB == 2: xdma(1)
    stamp(kind='pqr')
    if JP == 1: jump()
    e(f's_waitcnt vmcnt({(4 if XB <= 2 else 2) + SI})')
    amp(5)
    stamp(kind='pqr')
    for Tt in range(2):
        for s in range(4):
            e(f'ds_read_b128 {vr(WRAW+16*Tt+4*s,4)}, v{vWW} offset:{512*Tt+64*s}')
    if XB == 3: xdma(1)
    if JP == 2: jump()
    e('s_barrier')
    stamp(kind='pr')
    for i in range(8): e(rd[i])
    e('s_waitcnt lgkmcnt(8)')
    for Tt in range(2):
        for s in range(4):
            c = '0' if s == 0 else vr(UA+4*Tt, 4)
            e(f'v_mfma_f32_16x16x32_bf16 {vr(UA+4*Tt,4)}, {vr(HB+4*s,4)}, {vr(WRAW+16*Tt+4*s,4)}, {c}')
            e(rd[8 + 2*(4*Tt + s)]); e(rd[9 + 2*(4*Tt + s)])
    stamp(kind='r')
    for i in range(24, 31): e(rd[i])
    e(f'v_cvt_pk_bf16_f32 v{t2}, v{UA}, v{UA+4}')
    e(f'ds_write_b16 v{vAU}, v{t2} offset:{VU}')
    e(f'ds_write_b16_d16_hi v{vAU}, v{t2} offset:{VU+32}')
    for x in rd[31:48]: e(x)
    e('s_waitcnt vmcnt(4) lgkmcnt(15)' if SI else 's_waitcnt lgkmcnt(15)')
    e('s_barrier')
    e(sfr(0, 2)); e(sfr(0, 3))
    global XR
    XR = optval('xr', 14)
    YP = optval('yp', 0)
    if YP == 2:
        for q in range(3):
            e(f's_add_u32 m0, s5, {1088*(4+q)}'); e(rd[48+5*q])
            e(f'v_lshl_add_u32 v{vIDX[4+q]}, v{vIDX[4+q]}, 8, v{vCS}'); e(rd[49+5*q])
            e(f'buffer_load_dwordx4 v{vIDX[4+q]}, s[40:43], 0 offen nt lds')
            for x in rd[50+5*q:53+5*q]: e(x)
        e(rd[63])
    else:
        for x in rd[48:64-XR]: e(x)
    if YP == 1: ydma()
    stamp(kind='pr'); amp(6)
    e(f's_waitcnt vmcnt({5 if YP else 2})')
    stamp(kind='a'); amp(3)
    for s in range(2):
        e(f'ds_read_b128 {vr(RS["X"]+16+4*s,4)}, v{vXA} offset:{64*s}')
    for x in rd[64-XR:]: e(x)
    if 'pretouch' in OPTS: e(f'buffer_load_ushort v{vPF}, v{VOFF}, s[36:39], 0 offen')
    if YP == 0: ydma()
    e('s_cmp_eq_u32 s3, 4')
    global DEFER
    DEFER = [(c, k0, sfr(c, k0), sfr(c, k0 + 1)) for c in range(4) for k0 in (2, 0) if not (c == 0 and k0 == 2) and not (c < NE and k0 == 0)]
    return vXA

def main_phase(vXA):
    seq = []; edges = []; mem = []
    def a(s, info=None):
        x = Ins(s); x.info = info; seq.append(x); return x
    def load_set(S, addrs, vmw, earliest, lat):
        base = RS[S]
        w = a(f's_waitcnt vmcnt({vmw})', ('early', earliest)); mem.append(w)
        rd = [a(f'ds_read_b128 {vr(base+16+4*s,4)}, v{addrs} offset:{64*s}') for s in range(4)]
        mem.extend(rd)
        nd = 0
        if lat:
            wl = a('s_waitcnt lgkmcnt(0)'); mem.append(wl); edges.append((rd[3], wl, lat))
        for s in range(4): unpack(S, s, wl)
    def unpack(S, s, wl):
        base = RS[S]
        mu = optval('mu', 0) >> {'X': 0, 'Y': 1, 'Z': 2}[S] & 1 and not (S == 'X' and s == 0)
        for h in range(2):
            if mu and not (s == 3 and h == 1):
                x = a(f'v_mfma_f32_16x16x32_bf16 {vr(base+8*s+4*h,4)}, {ar(194-2*h,4)}, {vr(base+16+4*s,4)}, 0', ('U', -1, None))
                edges.append((wl, x, 0))
            else:
                for i in range(4 * s + 2 * h, 4 * s + 2 * h + 2):
                    x = a(f'v_lshlrev_b32 v{base+2*i}, 16, v{base+16+i}'); edges.append((wl, x, 0))
                    x = a(f'v_and_b32 v{base+2*i+1}, 0xffff0000, v{base+16+i}'); edges.append((wl, x, 0))
    prn = [0]
    def gen(t, ss=range(4)):
        P, Dp, p = TILES[t]
        for s in ss:
            for i in range(4):
                q = PR + 2 * (prn[0] % 4); prn[0] += 1
                for h in range(2):
                    r = 8 * s + 2 * i + h
                    if p == 'id': a(f'v_mul_f32 v{q+h}, v{RS[Dp]+r}, v{RS[P]+r}')
                    else: a(f'v_mul_f32_dpp v{q+h}, v{RS[Dp]+r}, v{RS[P]+r} {p}{FULL}')
                a(f'v_cvt_pk_bf16_f32 v{BF[t&1]+4*s+i}, v{q}, v{q+1}')
    base = RS['X']
    for s in range(2):
        wl = a(f's_waitcnt lgkmcnt({min(15, 1-s+XR)})'); mem.append(wl); unpack('X', s, wl)
    w = a('s_waitcnt vmcnt(%d)' % (4 if 'pretouch' in OPTS else 3), ('early', optval('xe', 12))); mem.append(w)
    rd = [a(f'ds_read_b128 {vr(base+16+4*s,4)}, v{vXA} offset:{2176+64*(s&1)}') for s in (2, 3)]; mem.extend(rd)
    wl = a('s_waitcnt lgkmcnt(0)'); mem.append(wl); edges.append((rd[1], wl, optval('xl', 20)))
    unpack('X', 2, wl); unpack('X', 3, wl)
    wdef = {}
    sp = optval('sp', 5)
    for i, (c, k0, r0, r1) in enumerate(DEFER):
        d0 = a(r0, ('early', 22 + sp * 2 * i)); d1 = a(r1, ('early', 22 + sp * (2 * i + 1)))
        w = a('s_waitcnt lgkmcnt(0)'); edges.append((d1, w, optval('wd', 10)))
        mem.extend([d0, d1, w])
        wdef[(c, k0)] = w
    for t in range(NT):
        if t == TY: load_set('Y', YA, 0, optval('ye', 170), 24)
        if t == TZ: load_set('Z', ZA, 0, optval('ze', 300), 24)
        if t == 0:
            gen(0, (0, 1)); gen(1, (0, 1)); gen(0, (2, 3)); gen(1, (2, 3))
        elif t > 1: gen(t)
        G, c = t // 4, t % 4
        d = vr(DD + 4 * G, 4)
        for k in range(2):
            x = a(f'v_smfmac_f32_16x16x64_bf16 {d}, {SF(c,2+k)}, {vr(BF[t&1]+8*k,8)}, v{SIDX}', ('S', t, 36 * t + 18 + 9 * k))
            if (t, 2) in wdef: edges.append((wdef[(t, 2)], x, 0))
        for m in range(8):
            acc = vr(ACC + 4 * m, 4)
            strict = t >= optval('mm', 1)
            for s0 in range(4):
                s = 3 - s0 if (strict and m % 2 and 'nosnake' not in OPTS) else s0
                cc = vr(BIAS + 4 * m, 4) if s0 == 0 else acc
                x = a(f'v_mfma_f32_16x16x32_bf16 {acc}, {WF(m,s)}, {vr(BF[t&1]+4*s,4)}, {cc}',
                      ('M', t, m, s0, 36 * t + (4.5 * m + s0 if strict else 9 * s0 + m)))
                if strict and s0 == 0 and m > 0: edges.append((prevm, x, 0))
                prevm = x
            for h in range(2):
                a(f'v_cvt_pk_bf16_f32 v{PK+2*m+h}, |v{ACC+4*m+2*h}|, |v{ACC+4*m+2*h+1}|')
            if m % 4 == 3:
                k = m // 4
                x = a(f'v_smfmac_f32_16x16x64_bf16 {d}, {SF(c,k)}, {vr(PK+8*k,8)}, v{SIDX}', ('S', t, 36 * t + 40 + 4 * k))
                if (t, 0) in wdef: edges.append((wdef[(t, 0)], x, 0))
        if c == 3 or t == NT - 1:
            a(f'v_add_f32 v{DD+4*G}, v{DD+4*G}, v{DD+4*G+1}')
            a(f'v_add_f32 v{DD+4*G+2}, v{DD+4*G+2}, v{DD+4*G+3}')
            if G == 2: a(f'v_max3_f32 v{VM}, v{DD}, v{DD+4}, v{DD+8}')
            if G == 4:
                E = lambda G: DD + 4 * G
                Q = lambda G: DD + 4 * G + 2
                ML, F = YA, YA + 1
                a(f'v_max3_f32 v{VM}, v{VM}, v{DD+12}, v{DD+16}')
                a(f'v_mul_f32 v{ML}, v{VM}, v{VC}')
                for r in (8, 4, 2, 1):
                    a(f'v_max_f32_dpp v{VM}, v{VM}, v{VM} row_ror:{r}{FULL}')
                a(f'v_max_f32_dpp v{VM}, v{VM}, v{VM} row_bcast:15 row_mask:0xa bank_mask:0xf')
                a(f'v_max_f32_dpp v{VM}, v{VM}, v{VM} row_bcast:31 row_mask:0xc bank_mask:0xf')
                a(f'v_readlane_b32 s14, v{VM}, 63')
                a(f'v_mul_f32 v{VT0}, s14, v{VC}')
                a(f'v_sub_f32 v{F}, v{ML}, v{VT0}')
                a(f'v_exp_f32 v{F}, v{F}')
                for g2 in range(5):
                    a(f'v_fma_f32 v{E(g2)}, v{E(g2)}, v{VC}, -v{ML}')
                    a(f'v_exp_f32 v{E(g2)}, v{E(g2)}')
                a(f'v_add_f32 v{VT1}, v{E(0)}, v{E(1)}')
                a(f'v_mul_f32 v{VT2}, v{E(0)}, v{Q(0)}')
                a(f'v_fmac_f32 v{VT2}, v{E(1)}, v{Q(1)}')
                for g2 in range(2, 5):
                    a(f'v_add_f32 v{VT1}, v{VT1}, v{E(g2)}')
                    a(f'v_fmac_f32 v{VT2}, v{E(g2)}, v{Q(g2)}')
                a(f'v_mul_f32 v{VT1}, v{VT1}, v{F}')
                a(f'v_mul_f32 v{VT2}, v{VT2}, v{F}')
                for r in (8, 4, 2, 1):
                    a(f'v_add_f32_dpp v{VT1}, v{VT1}, v{VT1} row_ror:{r}{FULL}')
                    a(f'v_add_f32_dpp v{VT2}, v{VT2}, v{VT2} row_ror:{r}{FULL}')
                for b, mk in ((15, '0xa'), (31, '0xc')):
                    a(f'v_add_f32_dpp v{VT1}, v{VT1}, v{VT1} row_bcast:{b} row_mask:{mk} bank_mask:0xf')
                    a(f'v_add_f32_dpp v{VT2}, v{VT2}, v{VT2} row_bcast:{b} row_mask:{mk} bank_mask:0xf')
                a(f'v_readlane_b32 s15, v{VT1}, 63')
                a(f'v_readlane_b32 s34, v{VT2}, 63')
    u0, u1, M5 = YA + 2, YA + 3, ZA
    a(f'v_max_f32 v{M5}, s14, v{E(5)}')
    for r in (4, 2, 1):
        a(f'v_max_f32_dpp v{M5}, v{M5}, v{M5} row_ror:{r}{FULL}')
    a(f'v_mul_f32 v{u0}, v{M5}, v{VC}')
    a(f'v_fma_f32 v{E(5)}, v{E(5)}, v{VC}, -v{u0}')
    a(f'v_sub_f32 v{u1}, v{VT0}, v{u0}')
    a(f'v_exp_f32 v{E(5)}, v{E(5)}')
    a(f'v_exp_f32 v{u1}, v{u1}')
    a(f'v_mul_f32 v{Q(5)}, v{E(5)}, v{Q(5)}')
    for r in (4, 2, 1):
        a(f'v_add_f32_dpp v{E(5)}, v{E(5)}, v{E(5)} row_ror:{r}{FULL}')
        a(f'v_add_f32_dpp v{Q(5)}, v{Q(5)}, v{Q(5)} row_ror:{r}{FULL}')
    a(f'v_fmac_f32 v{E(5)}, s15, v{u1}')
    a(f'v_fmac_f32 v{Q(5)}, s34, v{u1}')
    a(f'v_rcp_f32 v{E(5)}, v{E(5)}')
    a(f'v_mul_f32 v{Q(5)}, v{Q(5)}, v{E(5)}')
    a(f'v_cvt_pk_bf16_f32 v{Q(5)}, v{Q(5)}, v{Q(5)}')
    if 'nostore' not in OPTS: a(f'buffer_store_short v{Q(5)}, v{VOFF}, s[36:39], 0 offen' + ['', ' sc0 sc1', ' nt', ' sc1', ' sc0 sc1 nt'][optval('stm', 0)])
    for x, y in zip(mem, mem[1:]): edges.append((x, y, 0))
    nodes, byins = build_dag(seq, edges)
    BIG = 10 ** 6
    for n in reversed(nodes):
        inf = n.ins.info
        if n.ins.kind == 'mfma' and inf[0] != 'U': n.prio = inf[-1]
        else:
            lat = lambda q: (1 + max(d for p, d in q.preds if p is n)) * optval('lw', 40) / 100.0
            n.prio = min([q.prio - lat(q) for q in n.succs], default=36 * NT + optval('end', 20))
        if inf and inf[0] == 'early': n.earliest = inf[1]
    pend_m = [n for n in nodes if n.ins.kind == 'mfma']
    pend_v = sorted([n for n in nodes if n.ins.kind != 'mfma'], key=lambda n: (n.prio, n.idx))
    pos = 0; t = 0; pipe = 0; nm = 0; last = None; out = []; nops = 0; tile_t = {}
    def ready(n):
        return n.earliest <= nm and all(p.pos is not None and pos - p.pos - 1 >= d for p, d in n.preds)
    def pick_m():
        win = pend_m[:120]
        rd = [n for n in win if ready(n)]
        if not rd: return None
        if last is not None and last[0] == 'M' and last[3] < 3:
            for n in rd:
                i = n.ins.info
                if i[0] == 'M' and i[1:3] == last[1:3]: return n
        um = [n for n in rd if n.ins.info[0] == 'U']
        if um: return um[0]
        sm = [n for n in rd if n.ins.info[0] == 'S']
        mm = [n for n in rd if n.ins.info[0] == 'M']
        if sm and not (last is not None and last[0] == 'S' and mm): return sm[0]
        return min(mm, key=lambda n: n.ins.info[1:4])
    def pick_v():
        for n in pend_v:
            if ready(n): return n
        return None
    FREE = 'nofree' not in OPTS
    while pend_m or pend_v:
        if FREE and out and out[-1].kind == 'mfma' and out[-1].op.startswith('v_mfma'):
            f = next((n for n in pend_v if n.ins.kind in (('wait',) if 'fw' in OPTS else ('ds', 'wait')) and ready(n)), None)
            if f is not None:
                f.pos = pos; pend_v.remove(f); out.append(f.ins); pos += 1
                t += optval('fd', 4) if f.ins.kind == 'ds' else optval('fwc', 0)
                continue
        m = pick_m(); v = None
        if m is None or t < pipe: v = pick_v()
        if v is not None:
            v.pos = pos; pend_v.remove(v); out.append(v.ins); pos += 1; t += 8 if v.ins.op in ('v_exp_f32', 'v_rcp_f32') else optval('dc', 4) if v.ins.kind == 'ds' else 4
        elif m is not None:
            t = max(t, pipe)
            m.pos = pos; pend_m.remove(m); out.append(m.ins); pos += 1
            pipe = t + 16; t += optval('sc', 12) if m.ins.info[0] == 'S' else 8; nm += 1; last = m.ins.info
            tile_t.setdefault(last[1], t)
        else:
            out.append(Ins('s_nop 0')); pos += 1; t += 4; nops += 1
    if VERB:
        print('model cycles', t, 'nops', nops, 'tile starts', [tile_t[k] for k in sorted(tile_t)])
    for x in out:
        if x.kind == 'nop' and prog[-1].kind == 'nop' and int(prog[-1].ops[0]) < 15:
            prog[-1] = Ins(f's_nop {int(prog[-1].ops[0]) + 1}')
        else:
            prog.append(x)
            inf = getattr(x, 'info', None)
            if inf and inf[0] == 'M' and inf[2:4] == (0, 0) and (inf[1] in (0, 1, 2, 3, 7, 11, 15, 19)): stamp(kind='t')

def tail():
    amp(4)
    if AMPA >= 0:
        e('s_memrealtime s[94:95]')
        e('s_waitcnt lgkmcnt(0)')
        e('s_sub_u32 s92, s92, s90')
        e(f's_mul_i32 s92, s92, {AMPK}')
        e('s_min_u32 s92, s92, 20000')
        e('L_spin:')
        e('s_memrealtime s[96:97]')
        e('s_waitcnt lgkmcnt(0)')
        e('s_sub_u32 s96, s96, s94')
        e('s_cmp_lt_u32 s96, s92')
        e('s_cbranch_scc1 L_spin')
    if TIMING:
        stamp(kind='a'); stamp(True)
        e('s_waitcnt lgkmcnt(0)')
        e('s_mov_b32 s58, 0x1000000'); e('s_mov_b32 s59, 0x00020000')
        e('s_mul_i32 s9, s4, 128')
        e(f'v_mov_b32 v{VT0}, 0x7ffffff0')
        e(f'v_writelane_b32 v{VT0}, s9, 0')
        for i in range(stampn[0]):
            e(f'v_mov_b32 v{VT1}, s{76+2*i}')
            e(f'buffer_store_dword v{VT1}, v{VT0}, s[56:59], 0 offen offset:{4*i}')
    e('L_end:')

vXA = prologue()
n_pro = len(prog)
main_phase(vXA)
tail()
prog, nins = fix_hazards(prog, VERB)
errs = check_waitcnt(prog)
assert not errs, '\n'.join(errs[:20])
if VERB: print('instructions', len(prog), 'inserted states', nins, 'stamps', stampn[0])

def render(prog):
    body = '\n'.join(x.text if x.kind == 'label' else '    ' + x.text for x in prog)
    return HDR + HEAD + body + FOOT

HEAD = f"""; @launch grid=(256,1,1) block=(256,1,1) lds={LDS_TOTAL}
.amdgcn_target "amdgcn-amd-amdhsa--gfx950"
.text
.globl standalone__factorization_afm__recsys_kernel
.p2align 8
.type standalone__factorization_afm__recsys_kernel,@function
standalone__factorization_afm__recsys_kernel:
"""
FOOT = """
s_endpgm
.section .rodata,"a"
.p2align 6
.amdhsa_kernel standalone__factorization_afm__recsys_kernel
  .amdhsa_next_free_vgpr 448
  .amdhsa_next_free_sgpr 102
  .amdhsa_accum_offset 256
  .amdhsa_group_segment_fixed_size 0
  .amdhsa_kernarg_size 88
  .amdhsa_user_sgpr_count 2
  .amdhsa_user_sgpr_kernarg_segment_ptr 1
  .amdhsa_system_sgpr_workgroup_id_x 1
  .amdhsa_float_denorm_mode_32 3
.end_amdhsa_kernel
"""
def sizes(ins):
    import subprocess, tempfile, re
    d = tempfile.mkdtemp()
    open(d + '/a.s', 'w').write('.amdgcn_target "amdgcn-amd-amdhsa--gfx950"\n.text\nL_spin:\nL_back:\n' + '\n'.join(x.text for x in ins) + '\n')
    subprocess.run(['clang', '-x', 'assembler', '-target', 'amdgcn-amd-amdhsa', '-mcpu=gfx950', '-c', d + '/a.s', '-o', d + '/a.o'], check=True)
    o = subprocess.run(['llvm-objdump', '-d', '--mcpu=gfx950', d + '/a.o'], capture_output=True, text=True).stdout
    r = [4 * len(m.group(1).split()) for m in re.finditer(r'// [0-9A-F]{12}: ([0-9A-F ]+)', o)]
    assert len(r) == len(ins)
    return r
if 'nohop' not in OPTS:
    i0 = next(i for i, x in enumerate(prog) if x.text == 'L_main:') + 1
    body = [x for x in prog[i0:] if x.kind != 'label']
    sz = dict(zip(map(id, body), sizes(body)))
    newp = prog[:i0]; off = 0; k = 0; prev = None
    for x in prog[i0:]:
        if k < 4 and off >= 4096 * (k + 1) + optval('so', 0) and prev is not None and prev.op.startswith('v_mfma') and x.kind == 'valu':
            newp += [Ins(f'L_stub{k}:'), Ins('s_cbranch_scc1 ' + ('L_main2' if 'earlyhop' not in OPTS else 'L_main' if k == 0 else 'L_back'))]; off += 4; k += 1
        newp.append(x); off += sz.get(id(x), 0); prev = x
    assert k == 4, k
    prog = newp
    if VERB: print('main bytes', off)
open(OUT, 'w').write(render(prog))
```

```python
import sys, os
sys.path.insert(0, os.path.dirname(os.path.abspath(__file__)))
from asmlib import Ins, fix_hazards, check_waitcnt, build_dag

OUT = sys.argv[1] if len(sys.argv) > 1 else 'standalone__factorization_afm__recsys.s'
OPTS = set(sys.argv[2].split(',')) if len(sys.argv) > 2 else set()
TIMING = 'time' in OPTS
VERB = 'v' in OPTS
def optval(name, default):
    for o in OPTS:
        if o.startswith(name + '='):
            return int(o.split('=')[1])
    return default

HDR = open('standalone__factorization_afm__recsys.s.ref').read().split('; Override launch')[0]

XF = list(range(16))
YF = [22, 23, 17, 23, 25, 18, 24, 19, 21, 20, 23, 25, 24, 22, 16, 21]
ZF = [23, 20, 20, 16, 22, 19, 21, 16, 17, 18, 22, 18, 25, 24, 17, 19]
def pat(p):
    if p == 'id': return list(range(16))
    k, v = p.split(':'); v = int(v)
    return [(n - v) % 16 for n in range(16)] if k == 'row_ror' else [v] * 16
TILES = [('X', 'X', f'row_ror:{r}') for r in range(1, 8)]
TILES += [('X', 'Y', f'row_newbcast:{YF.index(f)}') for f in range(16, 26)]
TILES += [('Y', 'Z', 'row_ror:13'), ('Y', 'Z', 'row_ror:5'), ('Y', 'Z', 'id')]
TILES += [('X', 'X', 'row_ror:8')]
TY, TZ = 7, 17
NT = len(TILES)
FS = {'X': XF, 'Y': YF, 'Z': ZF}
seen = set(); VALID = []
for a, b, p in TILES:
    v = []
    for n in range(16):
        i, j = FS[a][n], FS[b][pat(p)[n]]
        assert i != j
        key = (min(i, j), max(i, j))
        v.append(key not in seen); seen.add(key)
    VALID.append(v)
assert len(seen) == 325 and sum(map(sum, VALID)) == 325
NG = (NT + 3) // 4
def group_mask(G):
    m = 0
    for c in range(4):
        t = 4 * G + c
        for n in range(16):
            if t < NT and VALID[t][n]: m |= 1 << (16 * c + n)
    return m

WWAVE = 8448
VEC = 4 * WWAVE
ROWS = VEC + 2944; ROWB = 7 * 1088
VH, VZ0, VU, VP, VB, VHN = VEC, VEC + 384, VEC + 640, VEC + 1024, VEC + 2176, VEC + 2688
LDS_TOTAL = ROWS + 4 * ROWB

SIDX = 1
YA, ZA = 2, 6
VC, VOFF, VM, VT0, VT1, VT2 = 10, 11, 12, 13, 14, 15
RS = {'X': 16, 'Y': 48, 'Z': 80}
BIAS, BF, ACC, PK, PR, DD = 112, [144, 160], 176, 208, 224, 232
def vr(a, n=1): return f'v{a}' if n == 1 else f'v[{a}:{a+n-1}]'
def ar(a, n=1): return f'a{a}' if n == 1 else f'a[{a}:{a+n-1}]'
def WF(t, s): return ar(16 * t + 4 * s, 4)
def SF(c, k): return ar(128 + 16 * c + 4 * k, 4)
FULL = ' row_mask:0xf bank_mask:0xf'

prog = []
def e(s, tag=None):
    x = Ins(s, tag); prog.append(x); return x
stampn = [0]
AMPA, AMPB, AMPK = optval('ampa', -1), optval('ampb', -1), optval('ampk', 8)
def amp(pt):
    if pt == AMPA: e('s_memrealtime s[90:91]')
    if pt == AMPB: e('s_memrealtime s[92:93]')
def stamp(real=False, kind='p'):
    mode = 't' if 'tt' in OPTS else 'q' if 'tq' in OPTS else 'r' if 'tr' in OPTS else 'p'
    if TIMING and (real or kind == 'a' or mode in kind):
        e(f's_mem{"real" if real else ""}time s[{76+2*stampn[0]}:{77+2*stampn[0]}]'); stampn[0] += 1; assert stampn[0] <= 13

POS = [16, 17, 18, 20, 21, 22, 24, 25, 26, 27]
def nib(F):
    P = [POS[f - 16] - 16 for f in F]
    lo = sum(P[n] << (4 * n) for n in range(8)); hi = sum(P[n + 8] << (4 * n) for n in range(8))
    return lo, hi

def prologue():
    T = iter(range(48, 80))
    tp = next(T); next(T)
    vN, vG, vK, vIO, vK4, vHB, vWD, vCS, vWW, vTR, vN2, vN3, vIOY, vCSX = [next(T) for _ in range(14)]
    vAH, vAP, vAU, vAB, vAZ, t0, t1, t2, vPF = [next(T) for _ in range(9)]
    vCL = [VM, VT0, VT1, VT2]
    vIDX = list(range(PK, PK + 7))
    vXA = PK + 8
    vSH, vSP, vSB, vSB2 = PK + 12, PK + 13, PK + 14, PK + 15
    WRAW = RS['Z']; HB = BF[0]; UA = ACC

    M = []
    m = M.append
    m('s_lshl_b32 s8, s4, 1')
    m(f'v_mov_b32 v{VOFF}, 0x7ffffff0')
    m(f'v_writelane_b32 v{VOFF}, s8, 0')
    m(f'v_lshlrev_b32 v{vHB}, 4, v{vG}')
    m(f'v_lshrrev_b32 v{vN2}, 2, v{vN}')
    m(f'v_and_b32 v{vN3}, 3, v{vN}')
    m('s_movk_i32 s12, 1056')
    m(f'v_and_b32 v{t0}, 2, v{vN2}')
    m(f'v_lshl_add_u32 v{t0}, v{t0}, 1, v{vN3}')
    m(f'v_mad_u32_u24 v{t0}, v{t0}, s12, v{vHB}')
    m(f'v_and_b32 v{t1}, 1, v{vN2}')
    m(f'v_lshl_add_u32 v{t1}, v{t1}, 8, s9')
    m(f'v_add_u32 v{vWW}, v{t0}, v{t1}')
    m(f'v_and_b32 v{t0}, 1, v{vG}')
    m(f'v_lshl_add_u32 v{t0}, v{t0}, 2, v{vN2}')
    m(f'v_and_b32 v{t1}, 2, v{vG}')
    m(f'v_lshlrev_b32 v{t1}, 8, v{t1}')
    m(f'v_lshl_add_u32 v{t1}, v{vN3}, 3, v{t1}')
    m(f'v_mad_u32_u24 v{vTR}, v{t0}, s12, v{t1}')
    m(f'v_lshlrev_b32 v{vAB}, 3, v{vK}')
    m(f'v_and_b32 v{t2}, 1, v{vK}')
    m(f'v_lshlrev_b32 v{t0}, 2, v{t2}')
    m(f'v_bfe_u32 v{t1}, v{vK}, 1, 2')
    m(f'v_and_or_b32 v{t1}, v{vK}, 56, v{t1}')
    m(f'v_add_lshl_u32 v{vAP}, v{t0}, v{t1}, 2')
    m(f'v_bfe_u32 v{t1}, v{vK}, 3, 1')
    m(f'v_and_or_b32 v{t1}, v{vK}, 50, v{t1}')
    m(f'v_or_b32 v{t0}, v{t0}, v{t1}')
    m(f'v_and_b32 v{t1}, 4, v{vK}')
    m(f'v_lshl_or_b32 v{t0}, v{t1}, 1, v{t0}')
    m(f'v_lshlrev_b32 v{vAH}, 2, v{t0}')
    m(f'v_and_b32 v{t0}, 2, v{vN}')
    m('s_lshl_b32 s8, s3, 6')
    m(f'v_lshl_add_u32 v{t1}, v{t0}, 3, s8')
    m(f'v_lshl_add_u32 v{t1}, v{vN2}, 2, v{t1}')
    m(f'v_lshl_add_u32 v{vAU}, v{t2}, 1, v{t1}')
    m(f'v_lshlrev_b32 v{t1}, 4, v{t2}')
    m(f'v_lshl_or_b32 v{t1}, v{vG}, 5, v{t1}')
    m('s_movk_i32 s13, 192')
    m(f'v_mad_u32_u24 v{t1}, v{t0}, s13, v{t1}')
    m(f'v_and_b32 v{t0}, 2, v{vG}')
    m(f'v_lshlrev_b32 v{t0}, 5, v{t0}')
    m(f'v_sub_u32 v{vCL[0]}, {1280+64}, v{t0}')
    m(f'v_mov_b32_dpp v{vCL[0]}, v{t1} quad_perm:[0,1,2,3] row_mask:0xf bank_mask:0x1')
    m('s_mov_b32 s13, 0xaaaa')
    m(f'v_mov_b32 v{SIDX}, 0x4444')
    m(f'v_mad_u32_u24 v{SIDX}, v{t2}, s13, v{SIDX}')
    for c in range(1, 4):
        m(f'v_mov_b32_dpp v{vCL[c]}, v{vCL[0]} row_ror:{4*c}{FULL}')
    m(f'v_mov_b64 {vr(DD,2)}, 0'); m(f'v_mov_b64 {vr(DD+2,2)}, 0')
    m(f'v_mul_u32_u24 v{t0}, 896, v{vG}')
    m(f'v_min_u32 v{t0}, 1536, v{t0}')
    m(f'v_lshl_add_u32 v{vAZ}, v{vN}, 4, v{t0}')
    m(f'ds_write_b128 v{vAZ}, {vr(DD,4)} offset:{VZ0}')
    m(f'v_lshl_add_u32 v{t0}, v{vN}, 7, s5')
    m(f'v_and_b32 v{t1}, 8, v{vN}')
    m(f'v_lshl_add_u32 v{t0}, v{t1}, 3, v{t0}')
    m(f'v_lshlrev_b32 v{t1}, 3, v{vN}')
    m(f'v_xor_b32 v{t1}, v{t1}, v{vHB}')
    m(f'v_and_or_b32 v{vXA}, v{t1}, 48, v{t0}')
    m(f'v_lshlrev_b32 v{t2}, 2, v{vN}')
    m(f's_add_u32 s8, s5, {4*1088}')
    for F, A in ((YF, YA), (ZF, ZA)):
        lo, hi = nib(F)
        m(f's_mov_b32 s12, {lo:#x}'); m(f's_mov_b32 s13, {hi:#x}')
        m(f'v_lshrrev_b64 {vr(tp,2)}, v{t2}, s[12:13]')
        m(f'v_and_b32 v{t0}, 15, v{tp}')
        m(f'v_lshl_add_u32 v{t1}, v{t0}, 8, s8')
        m(f'v_bfe_u32 v{t0}, v{tp}, 2, 2')
        m(f'v_lshl_add_u32 v{t1}, v{t0}, 6, v{t1}')
        m(f'v_xor_b32 v{t0}, v{tp}, v{vG}')
        m(f'v_and_b32 v{t0}, 3, v{t0}')
        m(f'v_lshl_add_u32 v{A}, v{t0}, 4, v{t1}')
    if optval('mu', 0):
        m(f'v_lshlrev_b32 v{t0}, 4, v{vN3}')
        m('s_movk_i32 s12, 0x3f80'); m('s_mov_b32 s13, 0')
        m(f'v_lshlrev_b64 {vr(tp,2)}, v{t0}, s[12:13]')
        m('s_mov_b32 s12, 0x00f0000f'); m('s_mov_b32 s13, 0xf0000f00')
        m(f'v_cndmask_b32 v{tp}, 0, v{tp}, s[12:13]')
        m(f'v_cndmask_b32 v{tp+1}, 0, v{tp+1}, s[12:13]')
        for r in (192, 193, 196, 197): m(f'v_accvgpr_write_b32 a{r}, 0')
        m(f'v_accvgpr_write_b32 a194, v{tp}'); m(f'v_accvgpr_write_b32 a195, v{tp+1}')
    assert group_mask(0) == (1 << 64) - 1
    for G in range(1, NG):
        gm = group_mask(G)
        m(f'v_mov_b64 {vr(DD+4*G,2)}, 0'); m(f'v_mov_b64 {vr(DD+4*G+2,2)}, 0')
        if gm != (1 << 64) - 1 and G != NG - 1:
            for ln in range(64):
                if not gm >> ln & 1: m(f'v_writelane_b32 v{DD+4*G}, s35, {ln}')
    m(f'v_mov_b32 v{VC}, 0x3f38aa3b')
    if VERB: print('math instructions', len(M))
    def math(k):
        for _ in range(min(k, len(M))): e(M.pop(0))

    stamp(True); stamp(kind='a'); amp(0)
    e('s_load_dwordx16 s[16:31], s[0:1], 0')
    if 'ko' not in OPTS:
        e('s_load_dwordx2 s[36:37], s[0:1], 64')
        if TIMING: e('s_load_dwordx2 s[56:57], s[0:1], 80')
    e('s_cmp_ge_u32 s2, 256')
    e('s_cbranch_scc1 L_end')
    e('s_getpc_b64 s[10:11]')
    e('L_pc:')
    PF = optval('pf', 2)
    if PF == 6:
        e(f'v_lshlrev_b32 v{t0}, 7, v0')
    else:
        e(f's_lshl_b32 s8, s2, {PF + 6}')
        e(f'v_lshrrev_b32 v{t1}, 6, v0')
        e(f'v_and_b32 v{t0}, {(1 << PF) - 1}, v0')
        e(f'v_lshl_or_b32 v{t0}, v{t1}, {PF}, v{t0}')
        e(f's_and_b32 s8, s8, {0x7fff & ~((1 << (PF + 9)) - 1):#x}')
        e(f'v_lshl_or_b32 v{t0}, v{t0}, 7, s8')
    e(f'v_min_u32 v{t0}, L_end-L_pc, v{t0}')
    e(f'global_load_dword v{vPF}, v{t0}, s[10:11]' + (' nt' if 'pfnt' in OPTS else ''))
    e(f'v_lshrrev_b32 v{t1}, 6, v0')
    e(f'v_and_b32 v{vN}, 15, v0')
    e(f'v_readfirstlane_b32 s3, v{t1}')
    e(f'v_bfe_u32 v{vG}, v0, 4, 2')
    e(f'v_and_b32 v{vK}, 63, v0')
    if 'noremap' in OPTS:
        e('s_lshl_b32 s4, s2, 2')
    else:
        e('s_and_b32 s4, s2, 7'); e('s_lshl_b32 s4, s4, 7')
        e('s_lshr_b32 s6, s2, 3'); e('s_lshl_b32 s6, s6, 2')
        e('s_add_u32 s4, s4, s6')
    e('s_add_u32 s4, s4, s3')
    e('s_mul_i32 s6, s4, 104')
    e(f'v_and_b32 v{vIO}, 0x38, v0')
    e(f'v_add_u32 v{vIO}, s6, v{vIO}')
    e(f'v_mul_u32_u24 v{vIOY}, 12, v{vG}')
    e(f'v_min_u32 v{vIOY}, 28, v{vIOY}')
    e(f'v_add_u32 v{vIOY}, s6, v{vIOY}')
    e(f's_mul_i32 s9, s3, {WWAVE}')
    e(f'v_and_b32 v{t0}, 2, v{vG}')
    e(f'v_add_u32 v{t0}, v{t0}, v{vG}')
    e(f'v_lshlrev_b32 v{t1}, 4, v{vN}')
    e(f'v_lshl_add_u32 v{vWD}, v{t0}, 10, v{t1}')
    e('s_bfe_u32 s8, s2, 0x30003')
    if 'norot' in OPTS: e('s_mov_b32 s8, 0')
    e('s_mul_i32 s44, s8, 1056')
    e('s_and_b32 s12, s8, 4'); e('s_add_u32 s12, s12, s8')
    e('s_lshl_b32 s7, s3, 5'); e('s_add_u32 s12, s12, s7')
    e('s_lshl_b32 s45, s12, 8')
    e('s_add_u32 m0, s44, s9')
    e(f'v_lshlrev_b32 v{vK4}, 2, v{vK}')
    e(f's_mul_i32 s5, s3, {ROWB}')
    e(f's_add_u32 s5, s5, {ROWS}')
    e('s_mov_b32 s42, 25600000'); e('s_mov_b32 s43, 0x00020000')
    e('s_mov_b32 s54, 32768'); e('s_mov_b32 s55, 0x00020000')
    e('s_mov_b32 s38, 2048'); e('s_mov_b32 s39, 0x00020000')
    e('s_mov_b32 s35, 0xff800000')
    e(f'v_xor_b32 v{t0}, v{vN}, v{vG}')
    e(f'v_lshlrev_b32 v{vCS}, 4, v{t0}')
    e(f'v_and_b32 v{vCSX}, 0x70, v{vCS}')
    e('s_movk_i32 s47, 128')
    math(optval('m0', 17))
    stamp(kind='q')
    e('s_waitcnt lgkmcnt(0)')
    stamp(kind='pq'); amp(1)
    SI = optval('si', 0)
    if SI: e('s_load_dwordx16 s[60:75], s[16:17], s6')
    else: e(f'global_load_dwordx2 {vr(vIDX[0],2)}, v{vIO}, s[16:17] nt')
    e('s_mov_b32 s52, s24'); e('s_mov_b32 s53, s25')
    if not SI: e(f'global_load_dwordx3 {vr(vIDX[4],3)}, v{vIOY}, s[16:17] offset:64 nt')
    e(f'global_load_dword v{vSH}, v{vK4}, s[28:29]')
    e(f'global_load_dword v{vSB2}, v{vK4}, s[26:27]')
    e(f'global_load_dword v{vSP}, v{vK4}, s[30:31]')
    if 'ko' in OPTS:
        e('s_load_dwordx2 s[36:37], s[0:1], 64')
        if TIMING: e('s_load_dwordx2 s[56:57], s[0:1], 80')
    MI = optval('mi', 8)
    for i in range(8):
        if i:
            e(f's_xor_b32 s46, s44, {1056*i}'); e('s_add_u32 m0, s46, s9')
            e(f's_xor_b32 s46, s45, {256*((i&3) + 8*(i>>2))}')
        if i >= 1: math(MI)
        e(f'buffer_load_dwordx4 v{vWD}, s[52:55], s{46 if i else 45} offen' + ['', ' sc1', ' sc0 sc1', ' sc0'][optval('wsc', 0)] + ' lds')
        if i % 4 == 3: stamp(kind='q')
    if SI: e(f'global_load_dwordx3 {vr(vIDX[4],3)}, v{vIOY}, s[16:17] offset:64 nt')
    e('s_mov_b32 s40, s18'); e('s_mov_b32 s41, s19')
    if SI: e(f'v_mov_b64 {vr(vIDX[2],2)}, 0')
    math(optval('m2', 1000))
    def hop():
        if 'nohop' not in OPTS:
            for k in range(4):
                e(f's_cmp_eq_u32 s3, {k}')
                e(f's_cbranch_scc1 L_stub{k}')
        e('L_back:')
    if 'earlyhop' in OPTS: hop()
    e(f's_mov_b32 m0, s5')
    stamp(kind='pq')
    e('s_waitcnt lgkmcnt(0)' if SI else 's_waitcnt vmcnt(12)')
    amp(2)
    stamp(kind='pq')
    def spread(i):
        for r in range(8): e(f'v_writelane_b32 v{vIDX[2+i]}, s{60+8*i+r}, {8*r}')
    def bcast(i):
        e(f'v_mov_b32_dpp v{vIDX[i]}, v{vIDX[2+i]} row_newbcast:0 row_mask:0xf bank_mask:0x3')
        e(f'v_mov_b32_dpp v{vIDX[i]}, v{vIDX[2+i]} row_newbcast:8 row_mask:0xf bank_mask:0xc')
    def xdma(half):
        for i in range(2):
            if SI and not half: spread(i); bcast(i)
            if i or half: e(f's_add_u32 m0, s5, {1088*(i + 2*half)}')
            if not half: e(f'v_lshl_add_u32 v{vIDX[i]}, v{vIDX[i]}, 8, v{vCSX}')
            else: e('s_nop 0')
            e(f'buffer_load_dwordx4 v{vIDX[i]}, s[40:43], {"s47" if half else 0} offen nt lds')
    def ydma():
        e('s_mov_b32 exec_hi, 0x0000ffff')
        for q in range(3):
            if q == 2: e('s_mov_b32 exec_hi, -1')
            e(f's_add_u32 m0, s5, {1088*(4+q)}')
            e(f'v_lshl_add_u32 v{vIDX[4+q]}, v{vIDX[4+q]}, 8, v{vCS}')
            e(f'buffer_load_dwordx4 v{vIDX[4+q]}, s[40:43], 0 offen nt lds')
    e('; ---- X rows (first halves), instruction page warm-up, small vectors via LDS, W^T fragments, u = W h')
    HX = optval('hx', 0)
    if not HX: xdma(0)
    XB = optval('xb', 2)
    if XB == 0: xdma(1)
    stamp(kind='q')
    math(1000)
    def jump():
        if 'earlyhop' not in OPTS: hop()
        e('s_branch L_main2')
        e('.p2align 12')
        e('L_main:')
        e('s_cbranch_scc1 L_back')
        e('L_main2:')
        stamp(kind='pq')
    JP = optval('jp', 0)
    if JP == 0: jump()
    if HX: xdma(0)
    if XB == 1: xdma(1)
    rd = []
    for s in range(4):
        for t in range(8):
            for hh in range(2):
                rd.append(f'ds_read_b64_tr_b16 {ar(16*t+4*s+2*hh,2)}, v{vTR} offset:{WWAVE*s+256*hh+32*t}')
    def sfr(c, k): return f'ds_read_b128 {SF(c,k)}, v{vCL[c]} offset:{VEC + 128*(k&1) + 640*(k>>1)}'
    e(f's_waitcnt vmcnt({(10 if XB > 1 else 12) + SI})')
    stamp(kind='r')
    e(f'ds_write_b32 v{vK4}, v{vSH} offset:{VHN}')
    e(f'v_lshlrev_b32 v{vSB}, 16, v{vSB2}')
    e(f'v_and_b32 v{vSB2}, 0xffff0000, v{vSB2}')
    e(f'ds_write_b64 v{vAB}, {vr(vSB,2)} offset:{VB}')
    e(f'ds_write_b32 v{vAH}, v{vSH} offset:{VH}')
    e(f'ds_write_b32 v{vAP}, v{vSP} offset:{VP}')
    for s in range(4):
        e(f'ds_read_b128 {vr(HB+4*s,4)}, v{vHB} offset:{VHN+64*s}')
    for t in range(8):
        e(f'ds_read_b128 {vr(BIAS+4*t,4)}, v{vHB} offset:{VB+64*t}')
    NE = optval('ne', 1)
    for c in range(NE): e(sfr(c, 0)); e(sfr(c, 1))
    if XB == 2: xdma(1)
    stamp(kind='pqr')
    if JP == 1: jump()
    e(f's_waitcnt vmcnt({(4 if XB <= 2 else 2) + SI})')
    amp(5)
    stamp(kind='pqr')
    for Tt in range(2):
        for s in range(4):
            e(f'ds_read_b128 {vr(WRAW+16*Tt+4*s,4)}, v{vWW} offset:{512*Tt+64*s}')
    if XB == 3: xdma(1)
    if JP == 2: jump()
    e('s_barrier')
    stamp(kind='pr')
    for i in range(8): e(rd[i])
    e('s_waitcnt lgkmcnt(8)')
    for Tt in range(2):
        for s in range(4):
            c = '0' if s == 0 else vr(UA+4*Tt, 4)
            e(f'v_mfma_f32_16x16x32_bf16 {vr(UA+4*Tt,4)}, {vr(HB+4*s,4)}, {vr(WRAW+16*Tt+4*s,4)}, {c}')
            e(rd[8 + 2*(4*Tt + s)]); e(rd[9 + 2*(4*Tt + s)])
    stamp(kind='r')
    for i in range(24, 31): e(rd[i])
    e(f'v_cvt_pk_bf16_f32 v{t2}, v{UA}, v{UA+4}')
    e(f'ds_write_b16 v{vAU}, v{t2} offset:{VU}')
    e(f'ds_write_b16_d16_hi v{vAU}, v{t2} offset:{VU+32}')
    for x in rd[31:48]: e(x)
    e('s_waitcnt vmcnt(4) lgkmcnt(15)' if SI else 's_waitcnt lgkmcnt(15)')
    e('s_barrier')
    e(sfr(0, 2)); e(sfr(0, 3))
    global XR
    XR = optval('xr', 0)
    YP = optval('yp', 1)
    if YP == 2:
        for q in range(3):
            e(f's_add_u32 m0, s5, {1088*(4+q)}'); e(rd[48+5*q])
            e(f'v_lshl_add_u32 v{vIDX[4+q]}, v{vIDX[4+q]}, 8, v{vCS}'); e(rd[49+5*q])
            e(f'buffer_load_dwordx4 v{vIDX[4+q]}, s[40:43], 0 offen nt lds')
            for x in rd[50+5*q:53+5*q]: e(x)
        e(rd[63])
    else:
        for x in rd[48:64-XR]: e(x)
    if YP == 1: ydma()
    stamp(kind='pr'); amp(6)
    e(f's_waitcnt vmcnt({5 if YP else 2})')
    stamp(kind='a'); amp(3)
    for s in range(2):
        e(f'ds_read_b128 {vr(RS["X"]+16+4*s,4)}, v{vXA} offset:{64*s}')
    for x in rd[64-XR:]: e(x)
    if 'pretouch' in OPTS: e(f'buffer_load_ushort v{vPF}, v{VOFF}, s[36:39], 0 offen')
    if YP == 0: ydma()
    e('s_cmp_eq_u32 s3, 4')
    global DEFER
    DEFER = [(c, k0, sfr(c, k0), sfr(c, k0 + 1)) for c in range(4) for k0 in (2, 0) if not (c == 0 and k0 == 2) and not (c < NE and k0 == 0)]
    return vXA

def main_phase(vXA):
    seq = []; edges = []; mem = []
    def a(s, info=None):
        x = Ins(s); x.info = info; seq.append(x); return x
    def load_set(S, addrs, vmw, earliest, lat):
        base = RS[S]
        w = a(f's_waitcnt vmcnt({vmw})', ('early', earliest)); mem.append(w)
        rd = [a(f'ds_read_b128 {vr(base+16+4*s,4)}, v{addrs} offset:{64*s}') for s in range(4)]
        mem.extend(rd)
        nd = 0
        if lat:
            wl = a('s_waitcnt lgkmcnt(0)'); mem.append(wl); edges.append((rd[3], wl, lat))
        for s in range(4): unpack(S, s, wl)
    def unpack(S, s, wl):
        base = RS[S]
        mu = optval('mu', 0) >> {'X': 0, 'Y': 1, 'Z': 2}[S] & 1 and not (S == 'X' and s == 0)
        for h in range(2):
            if mu and not (s == 3 and h == 1):
                x = a(f'v_mfma_f32_16x16x32_bf16 {vr(base+8*s+4*h,4)}, {ar(194-2*h,4)}, {vr(base+16+4*s,4)}, 0', ('U', -1, None))
                edges.append((wl, x, 0))
            else:
                for i in range(4 * s + 2 * h, 4 * s + 2 * h + 2):
                    x = a(f'v_lshlrev_b32 v{base+2*i}, 16, v{base+16+i}'); edges.append((wl, x, 0))
                    x = a(f'v_and_b32 v{base+2*i+1}, 0xffff0000, v{base+16+i}'); edges.append((wl, x, 0))
    prn = [0]
    def gen(t, ss=range(4)):
        P, Dp, p = TILES[t]
        for s in ss:
            for i in range(4):
                q = PR + 2 * (prn[0] % 4); prn[0] += 1
                for h in range(2):
                    r = 8 * s + 2 * i + h
                    if p == 'id': a(f'v_mul_f32 v{q+h}, v{RS[Dp]+r}, v{RS[P]+r}')
                    else: a(f'v_mul_f32_dpp v{q+h}, v{RS[Dp]+r}, v{RS[P]+r} {p}{FULL}')
                a(f'v_cvt_pk_bf16_f32 v{BF[t&1]+4*s+i}, v{q}, v{q+1}')
    base = RS['X']
    for s in range(2):
        wl = a(f's_waitcnt lgkmcnt({min(15, 1-s+XR)})'); mem.append(wl); unpack('X', s, wl)
    w = a('s_waitcnt vmcnt(%d)' % (4 if 'pretouch' in OPTS else 3), ('early', optval('xe', 12))); mem.append(w)
    rd = [a(f'ds_read_b128 {vr(base+16+4*s,4)}, v{vXA} offset:{2176+64*(s&1)}') for s in (2, 3)]; mem.extend(rd)
    wl = a('s_waitcnt lgkmcnt(0)'); mem.append(wl); edges.append((rd[1], wl, optval('xl', 20)))
    unpack('X', 2, wl); unpack('X', 3, wl)
    wdef = {}
    sp = optval('sp', 5)
    for i, (c, k0, r0, r1) in enumerate(DEFER):
        d0 = a(r0, ('early', 22 + sp * 2 * i)); d1 = a(r1, ('early', 22 + sp * (2 * i + 1)))
        w = a('s_waitcnt lgkmcnt(0)'); edges.append((d1, w, optval('wd', 10)))
        mem.extend([d0, d1, w])
        wdef[(c, k0)] = w
    for t in range(NT):
        if t == TY: load_set('Y', YA, 0, optval('ye', 170), 24)
        if t == TZ: load_set('Z', ZA, 0, optval('ze', 300), 24)
        if t == 0:
            gen(0, (0, 1)); gen(1, (0, 1)); gen(0, (2, 3)); gen(1, (2, 3))
        elif t > 1: gen(t)
        G, c = t // 4, t % 4
        d = vr(DD + 4 * G, 4)
        for k in range(2):
            x = a(f'v_smfmac_f32_16x16x64_bf16 {d}, {SF(c,2+k)}, {vr(BF[t&1]+8*k,8)}, v{SIDX}', ('S', t, 36 * t + 18 + 9 * k))
            if (t, 2) in wdef: edges.append((wdef[(t, 2)], x, 0))
        for m in range(8):
            acc = vr(ACC + 4 * m, 4)
            strict = t >= optval('mm', 1)
            for s0 in range(4):
                s = 3 - s0 if (strict and m % 2 and 'nosnake' not in OPTS) else s0
                cc = vr(BIAS + 4 * m, 4) if s0 == 0 else acc
                x = a(f'v_mfma_f32_16x16x32_bf16 {acc}, {WF(m,s)}, {vr(BF[t&1]+4*s,4)}, {cc}',
                      ('M', t, m, s0, 36 * t + (4.5 * m + s0 if strict else 9 * s0 + m)))
                if strict and s0 == 0 and m > 0: edges.append((prevm, x, 0))
                prevm = x
            for h in range(2):
                a(f'v_cvt_pk_bf16_f32 v{PK+2*m+h}, |v{ACC+4*m+2*h}|, |v{ACC+4*m+2*h+1}|')
            if m % 4 == 3:
                k = m // 4
                x = a(f'v_smfmac_f32_16x16x64_bf16 {d}, {SF(c,k)}, {vr(PK+8*k,8)}, v{SIDX}', ('S', t, 36 * t + 40 + 4 * k))
                if (t, 0) in wdef: edges.append((wdef[(t, 0)], x, 0))
        if c == 3 or t == NT - 1:
            a(f'v_add_f32 v{DD+4*G}, v{DD+4*G}, v{DD+4*G+1}')
            a(f'v_add_f32 v{DD+4*G+2}, v{DD+4*G+2}, v{DD+4*G+3}')
            if G == 2: a(f'v_max3_f32 v{VM}, v{DD}, v{DD+4}, v{DD+8}')
            if G == 4:
                E = lambda G: DD + 4 * G
                Q = lambda G: DD + 4 * G + 2
                ML, F = YA, YA + 1
                a(f'v_max3_f32 v{VM}, v{VM}, v{DD+12}, v{DD+16}')
                a(f'v_mul_f32 v{ML}, v{VM}, v{VC}')
                for r in (8, 4, 2, 1):
                    a(f'v_max_f32_dpp v{VM}, v{VM}, v{VM} row_ror:{r}{FULL}')
                a(f'v_max_f32_dpp v{VM}, v{VM}, v{VM} row_bcast:15 row_mask:0xa bank_mask:0xf')
                a(f'v_max_f32_dpp v{VM}, v{VM}, v{VM} row_bcast:31 row_mask:0xc bank_mask:0xf')
                a(f'v_readlane_b32 s14, v{VM}, 63')
                a(f'v_mul_f32 v{VT0}, s14, v{VC}')
                a(f'v_sub_f32 v{F}, v{ML}, v{VT0}')
                a(f'v_exp_f32 v{F}, v{F}')
                for g2 in range(5):
                    a(f'v_fma_f32 v{E(g2)}, v{E(g2)}, v{VC}, -v{ML}')
                    a(f'v_exp_f32 v{E(g2)}, v{E(g2)}')
                a(f'v_add_f32 v{VT1}, v{E(0)}, v{E(1)}')
                a(f'v_mul_f32 v{VT2}, v{E(0)}, v{Q(0)}')
                a(f'v_fmac_f32 v{VT2}, v{E(1)}, v{Q(1)}')
                for g2 in range(2, 5):
                    a(f'v_add_f32 v{VT1}, v{VT1}, v{E(g2)}')
                    a(f'v_fmac_f32 v{VT2}, v{E(g2)}, v{Q(g2)}')
                a(f'v_mul_f32 v{VT1}, v{VT1}, v{F}')
                a(f'v_mul_f32 v{VT2}, v{VT2}, v{F}')
                for r in (8, 4, 2, 1):
                    a(f'v_add_f32_dpp v{VT1}, v{VT1}, v{VT1} row_ror:{r}{FULL}')
                    a(f'v_add_f32_dpp v{VT2}, v{VT2}, v{VT2} row_ror:{r}{FULL}')
                for b, mk in ((15, '0xa'), (31, '0xc')):
                    a(f'v_add_f32_dpp v{VT1}, v{VT1}, v{VT1} row_bcast:{b} row_mask:{mk} bank_mask:0xf')
                    a(f'v_add_f32_dpp v{VT2}, v{VT2}, v{VT2} row_bcast:{b} row_mask:{mk} bank_mask:0xf')
                a(f'v_readlane_b32 s15, v{VT1}, 63')
                a(f'v_readlane_b32 s34, v{VT2}, 63')
    u0, u1, M5 = YA + 2, YA + 3, ZA
    a(f'v_max_f32 v{M5}, s14, v{E(5)}')
    for r in (4, 2, 1):
        a(f'v_max_f32_dpp v{M5}, v{M5}, v{M5} row_ror:{r}{FULL}')
    a(f'v_mul_f32 v{u0}, v{M5}, v{VC}')
    a(f'v_fma_f32 v{E(5)}, v{E(5)}, v{VC}, -v{u0}')
    a(f'v_sub_f32 v{u1}, v{VT0}, v{u0}')
    a(f'v_exp_f32 v{E(5)}, v{E(5)}')
    a(f'v_exp_f32 v{u1}, v{u1}')
    a(f'v_mul_f32 v{Q(5)}, v{E(5)}, v{Q(5)}')
    for r in (4, 2, 1):
        a(f'v_add_f32_dpp v{E(5)}, v{E(5)}, v{E(5)} row_ror:{r}{FULL}')
        a(f'v_add_f32_dpp v{Q(5)}, v{Q(5)}, v{Q(5)} row_ror:{r}{FULL}')
    a(f'v_fmac_f32 v{E(5)}, s15, v{u1}')
    a(f'v_fmac_f32 v{Q(5)}, s34, v{u1}')
    a(f'v_rcp_f32 v{E(5)}, v{E(5)}')
    a(f'v_mul_f32 v{Q(5)}, v{Q(5)}, v{E(5)}')
    a(f'v_cvt_pk_bf16_f32 v{Q(5)}, v{Q(5)}, v{Q(5)}')
    if 'nostore' not in OPTS: a(f'buffer_store_short v{Q(5)}, v{VOFF}, s[36:39], 0 offen' + ['', ' sc0 sc1', ' nt', ' sc1', ' sc0 sc1 nt'][optval('stm', 0)])
    for x, y in zip(mem, mem[1:]): edges.append((x, y, 0))
    nodes, byins = build_dag(seq, edges)
    BIG = 10 ** 6
    for n in reversed(nodes):
        inf = n.ins.info
        if n.ins.kind == 'mfma' and inf[0] != 'U': n.prio = inf[-1]
        else:
            lat = lambda q: (1 + max(d for p, d in q.preds if p is n)) * optval('lw', 40) / 100.0
            n.prio = min([q.prio - lat(q) for q in n.succs], default=36 * NT + optval('end', 20))
        if inf and inf[0] == 'early': n.earliest = inf[1]
    pend_m = [n for n in nodes if n.ins.kind == 'mfma']
    pend_v = sorted([n for n in nodes if n.ins.kind != 'mfma'], key=lambda n: (n.prio, n.idx))
    pos = 0; t = 0; pipe = 0; nm = 0; last = None; out = []; nops = 0; tile_t = {}
    def ready(n):
        return n.earliest <= nm and all(p.pos is not None and pos - p.pos - 1 >= d for p, d in n.preds)
    def pick_m():
        win = pend_m[:120]
        rd = [n for n in win if ready(n)]
        if not rd: return None
        if last is not None and last[0] == 'M' and last[3] < 3:
            for n in rd:
                i = n.ins.info
                if i[0] == 'M' and i[1:3] == last[1:3]: return n
        um = [n for n in rd if n.ins.info[0] == 'U']
        if um: return um[0]
        sm = [n for n in rd if n.ins.info[0] == 'S']
        mm = [n for n in rd if n.ins.info[0] == 'M']
        if sm and not (last is not None and last[0] == 'S' and mm): return sm[0]
        return min(mm, key=lambda n: n.ins.info[1:4])
    def pick_v():
        for n in pend_v:
            if ready(n): return n
        return None
    FREE = 'nofree' not in OPTS
    while pend_m or pend_v:
        if FREE and out and out[-1].kind == 'mfma' and out[-1].op.startswith('v_mfma'):
            f = next((n for n in pend_v if n.ins.kind in (('wait',) if 'fw' in OPTS else ('ds', 'wait')) and ready(n)), None)
            if f is not None:
                f.pos = pos; pend_v.remove(f); out.append(f.ins); pos += 1
                t += optval('fd', 4) if f.ins.kind == 'ds' else optval('fwc', 0)
                continue
        m = pick_m(); v = None
        if m is None or t < pipe: v = pick_v()
        if v is not None:
            v.pos = pos; pend_v.remove(v); out.append(v.ins); pos += 1; t += 8 if v.ins.op in ('v_exp_f32', 'v_rcp_f32') else optval('dc', 4) if v.ins.kind == 'ds' else 4
        elif m is not None:
            t = max(t, pipe)
            m.pos = pos; pend_m.remove(m); out.append(m.ins); pos += 1
            pipe = t + 16; t += optval('sc', 12) if m.ins.info[0] == 'S' else 8; nm += 1; last = m.ins.info
            tile_t.setdefault(last[1], t)
        else:
            out.append(Ins('s_nop 0')); pos += 1; t += 4; nops += 1
    if VERB:
        print('model cycles', t, 'nops', nops, 'tile starts', [tile_t[k] for k in sorted(tile_t)])
    for x in out:
        if x.kind == 'nop' and prog[-1].kind == 'nop' and int(prog[-1].ops[0]) < 15:
            prog[-1] = Ins(f's_nop {int(prog[-1].ops[0]) + 1}')
        else:
            prog.append(x)
            inf = getattr(x, 'info', None)
            if inf and inf[0] == 'M' and inf[2:4] == (0, 0) and (inf[1] in (0, 1, 2, 3, 7, 11, 15, 19)): stamp(kind='t')

def tail():
    amp(4)
    if AMPA >= 0:
        e('s_memrealtime s[94:95]')
        e('s_waitcnt lgkmcnt(0)')
        e('s_sub_u32 s92, s92, s90')
        e(f's_mul_i32 s92, s92, {AMPK}')
        e('s_min_u32 s92, s92, 20000')
        e('L_spin:')
        e('s_memrealtime s[96:97]')
        e('s_waitcnt lgkmcnt(0)')
        e('s_sub_u32 s96, s96, s94')
        e('s_cmp_lt_u32 s96, s92')
        e('s_cbranch_scc1 L_spin')
    if TIMING:
        stamp(kind='a'); stamp(True)
        e('s_waitcnt lgkmcnt(0)')
        e('s_mov_b32 s58, 0x1000000'); e('s_mov_b32 s59, 0x00020000')
        e('s_mul_i32 s9, s4, 128')
        e(f'v_mov_b32 v{VT0}, 0x7ffffff0')
        e(f'v_writelane_b32 v{VT0}, s9, 0')
        for i in range(stampn[0]):
            e(f'v_mov_b32 v{VT1}, s{76+2*i}')
            e(f'buffer_store_dword v{VT1}, v{VT0}, s[56:59], 0 offen offset:{4*i}')
    e('L_end:')

vXA = prologue()
n_pro = len(prog)
e('; ---- main phase: 21 tiles, softmax folded into the last tile')
main_phase(vXA)
tail()
prog, nins = fix_hazards(prog, VERB)
errs = check_waitcnt(prog)
assert not errs, '\n'.join(errs[:20])
if VERB: print('instructions', len(prog), 'inserted states', nins, 'stamps', stampn[0])

def render(prog):
    body = '\n'.join(x.text if x.kind == 'label' else '    ' + x.text for x in prog)
    return HDR + HEAD + body + FOOT

HEAD = f"""; @launch grid=(256,1,1) block=(256,1,1) lds={LDS_TOTAL}
; One wave = one batch element, 4 waves per workgroup, straight-line code.
;  hid^T = W^T pair^T with 16x16x32 bf16 MFMA (W^T fragments in AGPRs, bias as SrcC); the 325 pairs (triu order hardcoded as a
;  cover of 21 tiles of 16) are built with DPP multiplies from three f32 row sets X/Y/Z; e = 0.5*(hid.h + |hid|.h) and
;  q = pair.p are reduced with sparse MFMAs; two-level softmax with the true maximum; out = sum(alpha*q).
.amdgcn_target "amdgcn-amd-amdhsa--gfx950"
.text
.globl standalone__factorization_afm__recsys_kernel
.p2align 8
.type standalone__factorization_afm__recsys_kernel,@function
standalone__factorization_afm__recsys_kernel:
"""
FOOT = """
s_endpgm
.section .rodata,"a"
.p2align 6
.amdhsa_kernel standalone__factorization_afm__recsys_kernel
  .amdhsa_next_free_vgpr 448
  .amdhsa_next_free_sgpr 102
  .amdhsa_accum_offset 256
  .amdhsa_group_segment_fixed_size 0
  .amdhsa_kernarg_size 88
  .amdhsa_user_sgpr_count 2
  .amdhsa_user_sgpr_kernarg_segment_ptr 1
  .amdhsa_system_sgpr_workgroup_id_x 1
  .amdhsa_float_denorm_mode_32 3
.end_amdhsa_kernel
"""
def sizes(ins):
    import subprocess, tempfile, re
    d = tempfile.mkdtemp()
    open(d + '/a.s', 'w').write('.amdgcn_target "amdgcn-amd-amdhsa--gfx950"\n.text\nL_spin:\nL_back:\n' + '\n'.join(x.text for x in ins) + '\n')
    subprocess.run(['clang', '-x', 'assembler', '-target', 'amdgcn-amd-amdhsa', '-mcpu=gfx950', '-c', d + '/a.s', '-o', d + '/a.o'], check=True)
    o = subprocess.run(['llvm-objdump', '-d', '--mcpu=gfx950', d + '/a.o'], capture_output=True, text=True).stdout
    r = [4 * len(m.group(1).split()) for m in re.finditer(r'// [0-9A-F]{12}: ([0-9A-F ]+)', o)]
    assert len(r) == len(ins)
    return r
if 'nohop' not in OPTS:
    i0 = next(i for i, x in enumerate(prog) if x.text == 'L_main:') + 1
    body = [x for x in prog[i0:] if x.kind != 'label']
    sz = dict(zip(map(id, body), sizes(body)))
    newp = prog[:i0]; off = 0; k = 0; prev = None
    for x in prog[i0:]:
        if k < 4 and off >= 4096 * (k + 1) + optval('so', 0) and prev is not None and prev.op.startswith('v_mfma') and x.kind == 'valu':
            newp += [Ins(f'L_stub{k}:'), Ins('s_cbranch_scc1 ' + ('L_main2' if 'earlyhop' not in OPTS else 'L_main' if k == 0 else 'L_back'))]; off += 4; k += 1
        newp.append(x); off += sz.get(id(x), 0); prev = x
    assert k == 4, k
    prog = newp
    if VERB: print('main bytes', off)
open(OUT, 'w').write(render(prog))
```
